```python
import torch

def _softmax(x, axis=-1):
    return torch.softmax(x, dim=axis)
def _gelu(x):
    return torch.nn.functional.gelu(x, approximate="tanh")
def _silu(x):
    return torch.nn.functional.silu(x)
def _sigmoid(x):
    return torch.sigmoid(x)
def _layernorm(x, axis=-1, eps=1e-5):
    m = x.mean(dim=axis, keepdim=True)
    v = x.var(dim=axis, keepdim=True, unbiased=False)
    return (x - m) / torch.sqrt(v + eps)
def _scatter_add(tgt, idx, src, axis=0):
    return tgt.clone().index_add_(axis, idx, src)
def _segment_sum(src, seg, n):
    out = torch.zeros((n,) + src.shape[1:], dtype=src.dtype)
    return out.index_add_(0, seg, src)
def _pad(x, pw):
    flat = tuple(v for pair in reversed(pw) for v in pair)
    return torch.nn.functional.pad(x, flat)

kernel_name = 'sequential_preLN__linear_kernel_hedgehog__glu_gated_geglu__prompt'

def setup_inputs():

    _w = (lambda a: (lambda t: t.to(torch.bfloat16) if t.is_floating_point() else t)(torch.as_tensor(a)))
    def _A_setup():
        B, S, D, H = 1, 2048, 640, 32
        Dh = D // H
        return {
            "x": _w((lambda *s: torch.randn(*s, dtype=torch.bfloat16) * 0.05)(B, S, D)),
            "wqkv": _w((lambda *s: torch.randn(*s, dtype=torch.bfloat16) * 0.2)(D, 3 * D)),
            "w_phi": _w((lambda *s: torch.randn(*s, dtype=torch.bfloat16) * 0.2)(H, Dh, Dh) * (Dh ** -0.5)),
            "wo": _w((lambda *s: torch.randn(*s, dtype=torch.bfloat16) * 0.05)(D, D)),
        }
    _A_in = _A_setup()

    def _B_setup():
        B, S, Dm, Df = 1, 2048, 640, 1728
        return {
            "x": _w((lambda *s: torch.randn(*s, dtype=torch.bfloat16) * 0.05)(B, S, Dm)),
            "w_gate": _w((lambda *s: torch.randn(*s, dtype=torch.bfloat16) * 0.4)(Dm, Df) * (Dm ** -0.5)),
            "w_up": _w((lambda *s: torch.randn(*s, dtype=torch.bfloat16) * 0.4)(Dm, Df) * (Dm ** -0.5)),
            "w_down": _w((lambda *s: torch.randn(*s, dtype=torch.bfloat16) * 0.4)(Df, Dm) * (Df ** -0.5)),
        }
    _B_in = _B_setup()

    return {
        "A_x": _A_in["x"],
        "A_wqkv": _A_in["wqkv"],
        "A_w_phi": _A_in["w_phi"],
        "A_wo": _A_in["wo"],
        "B_x": _B_in["x"],
        "B_w_gate": _B_in["w_gate"],
        "B_w_up": _B_in["w_up"],
        "B_w_down": _B_in["w_down"],
    }

def reference(A_x, A_wqkv, A_w_phi, A_wo, B_x, B_w_gate, B_w_up, B_w_down):
    def _A_ref(x, wqkv, w_phi, wo):
        B, S, D = x.shape
        H = 32; Dh = D // H
        qkv = (lambda x, *d: x.permute(*d))((x @ wqkv).reshape(B, S, 3, H, Dh), 2, 0, 3, 1, 4)
        q, k, v = qkv[0], qkv[1], qkv[2]
        pq = torch.einsum("bhsd,hdf->bhsf", q, w_phi)
        pk = torch.einsum("bhsd,hdf->bhsf", k, w_phi)
        phi_q = torch.concatenate([_softmax(pq, axis=-1), _softmax(-pq, axis=-1)], axis=-1)
        phi_k = torch.concatenate([_softmax(pk, axis=-1), _softmax(-pk, axis=-1)], axis=-1)
        kv = torch.einsum("bhsf,bhsd->bhfd", phi_k, v)
        z  = torch.einsum("bhsf->bhf", phi_k)
        num = torch.einsum("bhqf,bhfd->bhqd", phi_q, kv)
        den = torch.einsum("bhqf,bhf->bhq", phi_q, z)[..., None] + 1e-6
        o = num / den
        return (lambda x, *d: x.permute(*d))(o, 0, 2, 1, 3).reshape(B, S, D) @ wo

    def _B_ref(x, w_gate, w_up, w_down):
        g = torch.einsum("bsd,df->bsf", x, w_gate)
        u = torch.einsum("bsd,df->bsf", x, w_up)
        h = _gelu(g) * u
        return torch.einsum("bsf,fd->bsd", h, w_down)

    x = A_x
    h = x + _A_ref(_layernorm(x, axis=-1), A_wqkv, A_w_phi, A_wo)
    h2 = h + _B_ref(_layernorm(h, axis=-1), B_w_gate, B_w_up, B_w_down)
    return h2
```

```python
import re

REG_RE = re.compile(r'^(-|abs\()?\s*([vas])(\d+|\[(\d+):(\d+)\])\)?$')

def parse_reg(tok):
    tok = tok.strip()
    if tok in ('vcc',): return [('s', 106), ('s', 107)]
    if tok == 'vcc_lo': return [('s', 106)]
    if tok == 'vcc_hi': return [('s', 107)]
    if tok == 'exec': return [('s', 126), ('s', 127)]
    if tok == 'exec_lo': return [('s', 126)]
    if tok == 'exec_hi': return [('s', 127)]
    if tok == 'm0': return [('s', 124)]
    if tok == 'scc': return []
    t = tok
    if t.startswith('-'): t = t[1:]
    if t.startswith('abs(') and t.endswith(')'): t = t[4:-1]
    if t.startswith('|') and t.endswith('|'): t = t[1:-1]
    m = re.match(r'^([vas])(\d+)$', t)
    if m: return [(m.group(1), int(m.group(2)))]
    m = re.match(r'^([vas])\[(\d+):(\d+)\]$', t)
    if m: return [(m.group(1), i) for i in range(int(m.group(2)), int(m.group(3)) + 1)]
    return []

TRANS = ('v_exp_f32', 'v_log_f32', 'v_rcp_f32', 'v_rsq_f32', 'v_sqrt_f32', 'v_sin_f32', 'v_cos_f32', 'v_rcp_iflag_f32')

class Inst:
    __slots__ = ('text', 'op', 'ops', 'mods', 'w', 'r', 'kind', 'label', 'target', 'nop', 'srcC', 'passes', 'comment', 'ab')
    def __init__(self, text):
        self.text = text
        self.label = None; self.target = None; self.nop = 0
        self.w = []; self.r = []; self.srcC = []; self.passes = 0; self.ab = []
        t = text.split(';')[0].strip()
        if t.endswith(':'):
            self.label = t[:-1]; self.kind = 'label'; self.op = ''; self.ops = []; return
        sp = t.split(None, 1)
        self.op = sp[0]
        rest = sp[1] if len(sp) > 1 else ''
        ops = []; depth = 0; cur = ''
        for ch in rest:
            if ch in '[(': depth += 1
            if ch in '])': depth -= 1
            if ch == ',' and depth == 0: ops.append(cur.strip()); cur = ''
            else: cur += ch
        if cur.strip(): ops.append(cur.strip())
        mods = []
        if ops:
            parts = ops[-1].split()
            ops[-1] = parts[0]; mods = parts[1:]
        self.ops = ops; self.mods = mods
        self.classify()

    def classify(self):
        op = self.op; ops = self.ops; R = parse_reg
        def allr(lst):
            out = []
            for o in lst: out += R(o)
            return out
        if op.startswith('.'):
            self.kind = 'directive'; return
        if op.startswith('v_mfma'):
            self.kind = 'mfma'; self.w = R(ops[0]); self.r = allr(ops[1:]); self.srcC = R(ops[3]); self.ab = allr(ops[1:3])
            self.passes = 8 if '32x32' in op else 4
            return
        if op.startswith('v_'):
            self.kind = 'valu'
            base = op.replace('_e32', '').replace('_e64', '').replace('_dpp', '').replace('_sdwa', '')
            if base in TRANS: self.kind = 'trans'
            if base.startswith('v_cmpx'):
                self.w = R(ops[0]) + R('exec'); self.r = allr(ops[1:])
            elif base.startswith('v_cmp'):
                self.w = R(ops[0]); self.r = allr(ops[1:])
            elif base in ('v_permlane16_swap_b32', 'v_permlane32_swap_b32', 'v_swap_b32'):
                self.w = allr(ops); self.r = allr(ops)
            elif base in ('v_add_co_u32', 'v_sub_co_u32', 'v_subrev_co_u32'):
                self.w = R(ops[0]) + R(ops[1]); self.r = allr(ops[2:])
            elif base in ('v_addc_co_u32', 'v_subb_co_u32'):
                self.w = R(ops[0]) + R(ops[1]); self.r = allr(ops[2:])
            elif base in ('v_fmac_f32', 'v_dot2c_f32_bf16', 'v_pk_fmac_f16', 'v_writelane_b32'):
                self.w = R(ops[0]); self.r = allr(ops)
            elif base == 'v_nop':
                pass
            else:
                self.w = R(ops[0]); self.r = allr(ops[1:])
                if base == 'v_cndmask_b32' and len(ops) == 3: self.r += R('vcc')
            if '_dpp' in op: self.r += R(ops[0])
            return
        if op.startswith('ds_'):
            self.kind = 'ds'
            if op.startswith('ds_read') or op.startswith('ds_bpermute') or op.startswith('ds_permute') or op.startswith('ds_swizzle') or '_rtn' in op:
                self.w = R(ops[0]); self.r = allr(ops[1:])
            else:
                self.r = allr(ops)
            return
        if op.startswith('buffer_') or op.startswith('global_'):
            self.kind = 'vmem'
            if op in ('buffer_wbl2', 'buffer_inv'):
                return
            lds = ('lds' in self.mods) or op.startswith('global_load_lds')
            if 'load' in op and not lds:
                self.w = R(ops[0]); self.r = allr(ops[1:])
            elif lds:
                self.r = allr(ops) + R('m0'); self.kind = 'vmem_lds'
            elif 'atomic' in op and 'sc0' in self.mods:
                if op.startswith('buffer_'):
                    self.w = R(ops[0]); self.r = allr(ops)
                else:
                    self.w = R(ops[0]); self.r = allr(ops[1:])
            else:
                self.r = allr(ops)
            return
        if op.startswith('s_'):
            self.kind = 'salu'
            if op.startswith('s_load') or op.startswith('s_buffer_load') or op in ('s_memtime', 's_memrealtime'):
                self.kind = 'smem'; self.w = R(ops[0]); self.r = allr(ops[1:]); return
            if op == 's_nop':
                self.kind = 'nop'; self.nop = int(ops[0], 0) + 1; return
            if op in ('s_branch',) or op.startswith('s_cbranch'):
                self.kind = 'branch'; self.target = ops[0]; return
            if op in ('s_waitcnt', 's_barrier', 's_endpgm', 's_setprio', 's_sleep', 's_sendmsg'):
                self.kind = op; return
            if op.startswith('s_cmp') or op.startswith('s_bitcmp'):
                self.r = allr(ops); return
            if 'saveexec' in op:
                self.w = R(ops[0]) + R('exec'); self.r = allr(ops[1:]) + R('exec'); return
            if op in ('s_addk_i32', 's_mulk_i32'):
                self.w = R(ops[0]); self.r = R(ops[0]); return
            self.w = R(ops[0]); self.r = allr(ops[1:])
            return
        raise ValueError('unknown instr: ' + self.text)

    def states(self):
        if self.kind in ('label', 'directive'): return 0
        if self.kind == 'nop': return self.nop
        return 1

def is_valu(i): return i.kind in ('valu', 'trans')
def is_wide_store(i):
    return i.kind == 'vmem' and 'store' in i.op and (i.op.endswith('x4') or i.op.endswith('x3'))

def need(prod, cons):
    n = 0
    pw = set(prod.w)
    if prod.kind == 'mfma':
        p = prod.passes
        if cons.kind == 'mfma':
            if pw & set(cons.ab): n = max(n, {4: 8, 8: 12}[p])
            c = set(cons.srcC)
            if pw & c:
                if cons.srcC == prod.w and cons.passes == p: n = max(n, 0)
                else: n = max(n, {4: 6, 8: 10}[p])
            elif pw & set(cons.w): n = max(n, {4: 6, 8: 10}[p])
        elif cons.kind in ('valu', 'trans', 'ds', 'vmem', 'vmem_lds'):
            if pw & (set(cons.r) | set(cons.w)): n = max(n, {4: 8, 8: 12}[p])
            if is_valu(cons) and set(prod.srcC) & set(cons.w): n = max(n, {4: 3, 8: 7}[p])
        return n
    if is_valu(prod):
        vw = set(x for x in pw if x[0] in 'va')
        sw = set(x for x in pw if x[0] == 's')
        if cons.kind == 'mfma' and vw & set(cons.r): n = max(n, 2)
        if cons.kind == 'mfma' and (('s', 126) in sw): n = max(n, 4)
        if is_valu(cons):
            if prod.kind == 'trans' and vw & set(cons.r): n = max(n, 1)
            if ('_dpp' in cons.op) and vw & set(cons.r): n = max(n, 2)
            if ('_dpp' in cons.op) and (('s', 126) in sw): n = max(n, 5)
            if 'permlane' in cons.op and vw & set(cons.r): n = max(n, 2)
            if 'permlane' in cons.op and (('s', 126) in sw): n = max(n, 4)
            if ('readlane' in cons.op or 'readfirstlane' in cons.op):
                if vw & set(cons.r): n = max(n, 1)
                if sw & set(cons.r): n = max(n, 4)
                if ('s', 126) in sw: n = max(n, 4)
            if 'writelane' in cons.op and sw & set(cons.r): n = max(n, 4)
            if sw & set(cons.r): n = max(n, 2)
            if ('_sdwa' in prod.op or 'op_sel' in ' '.join(prod.mods)) and not prod.op.startswith('v_pk') and vw & (set(cons.r) | set(cons.w)): n = max(n, 1)
            if prod.op.startswith('v_dot'):
                if vw & (set(cons.r) | set(cons.w)):
                    same = cons.op == prod.op
                    if same and (cons.op.startswith('v_dot2c') and not (vw & set(parse_reg(cons.ops[1]) + parse_reg(cons.ops[2])))): pass
                    elif same and len(cons.ops) == 4 and not (vw & set(parse_reg(cons.ops[1]) + parse_reg(cons.ops[2]))): pass
                    else: n = max(n, 3)
        if prod.op.startswith('v_dot') and cons.kind in ('mfma', 'ds', 'vmem', 'vmem_lds') and vw & set(cons.r): n = max(n, 3)
        if cons.kind in ('vmem', 'vmem_lds') and sw & set(cons.r): n = max(n, 5)
        if cons.kind in ('salu', 'branch') and sw & set(cons.r): n = max(n, 1)
        return n
    if is_wide_store(prod):
        data = set(parse_reg(prod.ops[0] if prod.op.startswith('buffer') else prod.ops[1]))
        if data & set(cons.w): n = max(n, 2 if is_valu(cons) else 1)
        return n
    if prod.kind == 'salu':
        if ('s', 124) in pw and (cons.kind == 'vmem_lds'): n = max(n, 1)
    return n

MAXD = 14

class Kernel:
    def __init__(self, name):
        self.name = name; self.ins = []; self.uid = 0
        self.vmax = 0; self.smax = 0; self.amax = -1
    def __call__(self, text):
        for line in text.split('\n'):
            line = line.strip()
            if not line or line.startswith(';'): continue
            self.ins.append(Inst(line))
    def label(self, base='L'):
        self.uid += 1
        return f'{base}_{self.name}_{self.uid}'
    def fix_hazards(self):
        changed = True; it = 0
        while changed:
            changed = False; it += 1
            ins = self.ins
            labels = {i.label: k for k, i in enumerate(ins) if i.kind == 'label'}
            srcs = {}
            for k, i in enumerate(ins):
                if i.kind == 'branch': srcs.setdefault(labels[i.target], []).append(k)
            out = []
            for k, c in enumerate(ins):
                req = 0
                if c.kind not in ('label', 'directive', 'nop'):
                    stack = [(k - 1, 0)]; seen = set()
                    while stack:
                        j, d = stack.pop()
                        while j >= 0 and d < MAXD:
                            if (j, d) in seen: break
                            seen.add((j, d))
                            p = ins[j]
                            if p.kind == 'label':
                                for s in srcs.get(j, []): stack.append((s, d))
                                if j > 0 and (ins[j - 1].op in ('s_branch', 's_endpgm')): break
                                j -= 1; continue
                            n = need(p, c)
                            if n > d: req = max(req, n - d)
                            d += p.states(); j -= 1
                if req > 0:
                    out.append(Inst(f's_nop {req - 1}')); changed = True
                    out.append(c); out += ins[k + 1:]
                    break
                out.append(c)
            self.ins = out
            if it > 20000: raise RuntimeError('hazard loop')
    def fix_hazards_fast(self):
        for _ in range(10):
            ins = self.ins
            labels = {i.label: k for k, i in enumerate(ins) if i.kind == 'label'}
            srcs = {}
            for k, i in enumerate(ins):
                if i.kind == 'branch':
                    if i.target not in labels: raise ValueError('no label ' + i.target)
                    srcs.setdefault(labels[i.target], []).append(k)
            extra = {}
            for k, c in enumerate(ins):
                if c.kind in ('label', 'directive', 'nop'): continue
                req = 0
                stack = [(k - 1, 0)]; seen = set()
                while stack:
                    j, d = stack.pop()
                    while j >= 0 and d < MAXD:
                        if (j, d) in seen: break
                        seen.add((j, d))
                        p = ins[j]
                        if p.kind == 'label':
                            for s in srcs.get(j, []): stack.append((s, d))
                            if j > 0 and (ins[j - 1].op in ('s_branch', 's_endpgm')): break
                            j -= 1; continue
                        n = need(p, c)
                        if n > d: req = max(req, n - d)
                        d += p.states() + extra.get(j, 0); j -= 1
                if req > 0: extra[k] = req
            if not extra: return
            out = []
            for k, c in enumerate(ins):
                if k in extra: out.append(Inst(f's_nop {extra[k] - 1}'))
                out.append(c)
            self.ins = out
        raise RuntimeError('hazards did not converge')
    def regs(self):
        for i in self.ins:
            for (t, n) in list(i.w) + list(i.r):
                if t == 'v': self.vmax = max(self.vmax, n)
                elif t == 'a': self.amax = max(self.amax, n)
                elif t == 's' and n < 102: self.smax = max(self.smax, n)
    def check_waits(self):
        ins = self.ins
        labels = {i.label: k for k, i in enumerate(ins) if i.kind == 'label'}
        errs = []
        def run(pc, vm, lg, visits, depth):
            while pc < len(ins):
                i = ins[pc]
                key = (pc, tuple(vm), tuple(lg))
                if key in visits: return
                visits.add(key)
                if i.kind == 's_endpgm': return
                if i.kind == 's_waitcnt':
                    t = i.text
                    m = re.search(r'vmcnt\((\d+)\)', t)
                    if m:
                        n = int(m.group(1)); vm = vm[len(vm) - n:] if n < len(vm) else vm
                        if n == 0: vm = []
                    m = re.search(r'lgkmcnt\((\d+)\)', t)
                    if m:
                        n = int(m.group(1))
                        if any(x[0] == 'smem' for x in lg) and n > 0: pass
                        else:
                            lg = lg[len(lg) - n:] if n < len(lg) else lg
                            if n == 0: lg = []
                elif i.kind not in ('label', 'directive'):
                    touched = set(i.r) | set(i.w)
                    for q in (vm, lg):
                        for e in q:
                            if touched & set(e[1]) and not (i.kind == 'vmem' and tuple(i.w) == e[1] == (('v', 1),)):
                                errs.append((pc, i.text, e[2]))
                    if i.kind in ('vmem', 'vmem_lds') and i.op not in ('buffer_wbl2', 'buffer_inv'):
                        vm = vm + [('vm', tuple(i.w), i.text)]
                        vm = vm[-64:]
                    elif i.kind == 'ds': lg = lg + [('ds', tuple(i.w), i.text)]; lg = lg[-32:]
                    elif i.kind == 'smem' and i.op not in ('s_memtime', 's_memrealtime'): lg = lg + [('smem', tuple(i.w), i.text)]
                    if i.kind == 'branch':
                        t = labels[i.target]
                        if i.op == 's_branch': pc = t; continue
                        if depth < 200: run(t, list(vm), list(lg), visits, depth + 1)
                pc += 1
        import sys
        sys.setrecursionlimit(10000)
        run(0, [], [], set(), 0)
        return errs
    def text(self):
        out = []
        for i in self.ins:
            out.append(i.text if i.kind == 'label' else '    ' + i.text)
        return '\n'.join(out)

def build_file(header_lines, kernels, launches):
    out = list(header_lines)
    for (n, g, b, l) in launches:
        out.append(f'; @launch kernel={n} grid=({g},1,1) block=({b},1,1) lds={l}')
    out.append('.amdgcn_target "amdgcn-amd-amdhsa--gfx950"')
    out.append('.text')
    out.append('.p2align 8\ncode_begin:')
    for k in kernels:
        out.append(f'.globl {k.name}\n.p2align 8\n.type {k.name},@function\n{k.name}:')
        out.append(k.text())
    out.append('code_end:')
    out.append('.section .rodata,"a"')
    for k in kernels:
        k.regs()
        acc = (k.vmax + 1 + 3) // 4 * 4
        nfv = acc + (k.amax + 1) if k.amax >= 0 else k.vmax + 1
        out.append(f'.p2align 6\n.amdhsa_kernel {k.name}\n  .amdhsa_next_free_vgpr {nfv}\n  .amdhsa_next_free_sgpr {max(k.smax + 1, 8)}\n'
                   f'  .amdhsa_accum_offset {acc}\n  .amdhsa_group_segment_fixed_size 0\n  .amdhsa_kernarg_size 88\n'
                   f'  .amdhsa_user_sgpr_count 2\n  .amdhsa_user_sgpr_kernarg_segment_ptr 1\n  .amdhsa_system_sgpr_workgroup_id_x 1\n'
                   f'  .amdhsa_float_denorm_mode_32 3\n  .amdhsa_float_denorm_mode_16_64 3\n.end_amdhsa_kernel')
    return '\n'.join(out) + '\n'
```

```python
from asmlib import *
from layout import *

OOB = 0x40000000

def srd(k, d, lo, hi, nbytes):
    k(f's_mov_b32 s{d}, {lo}\ns_mov_b32 s{d+1}, {hi}\ns_mov_b32 s{d+2}, {nbytes}\ns_mov_b32 s{d+3}, 0x20000')

def srd_ws(k, d, wslo, off, nbytes):
    k(f's_add_u32 s{d}, s{wslo}, {off}\ns_addc_u32 s{d+1}, s{wslo+1}, 0\ns_mov_b32 s{d+2}, {nbytes}\ns_mov_b32 s{d+3}, 0x20000')

def sdiv(k, dst, src, c, maxv):
    for sh in range(8, 24):
        m = -(-(1 << sh) // c)
        if all((v * m) >> sh == v // c for v in range(maxv + 1)) and m * maxv < (1 << 31):
            k(f's_mul_i32 s{dst}, s{src}, {m}\ns_lshr_b32 s{dst}, s{dst}, {sh}'); return
    raise ValueError

class Stamps:
    def __init__(self, k, on, slot): self.k = k; self.on = on; self.n = 0; self.slot = slot
    def __call__(self):
        if self.on:
            self.k(f's_memtime s[{80 + 2*self.n}:{81 + 2*self.n}]'); self.n += 1
    def dump(self, role, wave_sgpr):
        if not self.on: return
        k = self.k
        k('s_waitcnt lgkmcnt(0) vmcnt(0)')
        k(f's_memtime s[{80 + 2*self.n}:{81 + 2*self.n}]\ns_waitcnt lgkmcnt(0)'); n = self.n + 1
        srd_ws(k, 76, 4, WS_DBG + self.slot * 0x100000, 0x100000)
        k(f's_lshl_b32 s3, s2, 3\ns_add_u32 s3, s3, s{wave_sgpr}\ns_add_u32 s3, s3, {role}\ns_lshl_b32 s3, s3, 7')
        k('v_mov_b32 v1, 0')
        for i in range(n):
            k(f'v_mov_b32 v2, s{80 + 2*i}\nbuffer_store_dword v2, v1, s[76:79], s3 offen offset:{4*i}')
        k('s_waitcnt vmcnt(0)')

def gemm_kernel(name, kind, stamps=False):
    k = Kernel(name)
    if kind in ('k2', 'k4'):
        NWG, RB, XB, NL, TT, SL = 250, 82, 12, 1, 3, 7
        NST = 10 if kind == 'k2' else 27
        XP = 1280 if kind == 'k2' else 3456
        WP = 1280
        U = 2
    else:
        NWG, RB, XB, NL, TT, SL = 216, 256, 32, 2, 8, 3
        NST, XP, WP = 10, 1280, 3456
        U = 1
    SLOT = XB * 1024 + NL * 8192
    MISC = SL * SLOT
    LDS = MISC + (12288 if kind != 'k3' else 4096)
    nX = XB // 4
    nD = nX + 2 * NL

    Lend = k.label('end'); Lload = k.label('loader')
    k(f's_cmp_ge_u32 s2, {NWG}\ns_cbranch_scc1 {Lend}')
    st = Stamps(k, stamps, {'k2': 0, 'k3': 1, 'k4': 2}[kind]); st()
    k(f's_load_dwordx2 s[4:5], s[0:1], {WS}')
    if kind == 'k2':
        k(f's_load_dwordx2 s[6:7], s[0:1], {A_WO}\ns_load_dwordx2 s[8:9], s[0:1], {A_X}')
    elif kind == 'k3':
        k(f's_load_dwordx4 s[8:11], s[0:1], {B_WG}')
    else:
        k(f's_load_dwordx4 s[8:11], s[0:1], {B_WD}')
    k('s_and_b32 s20, s2, 7\ns_lshr_b32 s21, s2, 3')
    if kind != 'k3':
        k('s_mul_i32 s22, s20, 31\ns_min_u32 s23, s20, 2\ns_add_u32 s22, s22, s23\ns_add_u32 s22, s22, s21')
        k('s_cmp_ge_u32 s22, 125\ns_cselect_b32 s23, 1, 0\ns_mul_i32 s24, s23, 125\ns_sub_u32 s22, s22, s24')
        sdiv(k, 30, 22, 5, 124)
        k('s_mul_i32 s24, s30, 5\ns_sub_u32 s24, s22, s24')
        k('s_mul_i32 s31, s23, 5\ns_add_u32 s31, s31, s24')
        a, b = (3, 2) if kind == 'k2' else (4, 5)
        k(f's_mul_i32 s32, s30, {a}\ns_mul_i32 s25, s24, {b}\ns_add_u32 s32, s32, s25')
        sdiv(k, 25, 32, NST, 24 * a + 4 * b)
        k(f's_mul_i32 s25, s25, {NST}\ns_sub_u32 s32, s32, s25')
    else:
        k('s_lshr_b32 s22, s20, 2\ns_mul_i32 s22, s22, 27\ns_add_u32 s22, s22, s21')
        k('s_lshr_b32 s31, s22, 1\ns_and_b32 s24, s22, 1\ns_and_b32 s23, s20, 3\ns_lshl_b32 s30, s23, 1\ns_add_u32 s30, s30, s24')
        k('s_mul_i32 s32, s31, 3\ns_mul_i32 s25, s24, 5\ns_add_u32 s32, s32, s25')
        sdiv(k, 25, 32, NST, 26 * 3 + 6)
        k(f's_mul_i32 s25, s25, {NST}\ns_sub_u32 s32, s32, s25')
    k(f's_mul_i32 s33, s30, {RB}')
    k('s_lshl_b32 s34, s31, 7')
    k(f's_mov_b32 s74, {SLOT}\ns_mov_b32 s75, {S}')
    k('v_lshrrev_b32 v1, 6, v0\nv_and_b32 v0, 63, v0\nv_readfirstlane_b32 s35, v1')
    k('s_waitcnt lgkmcnt(0)')
    if kind == 'k2':
        srd_ws(k, 40, 4, WS_O, S * 1280); srd(k, 44, 's6', 's7', D * 1280); srd(k, 48, 's8', 's9', S * 1280)
        srd_ws(k, 52, 4, WS_H, S * 1280); srd_ws(k, 56, 4, WS_ST, 20 * S * 8)
    elif kind == 'k3':
        srd_ws(k, 40, 4, WS_H, S * 1280); srd(k, 44, 's8', 's9', D * 3456); srd(k, 48, 's10', 's11', D * 3456)
        srd_ws(k, 52, 4, WS_HH, S * 3456); srd_ws(k, 56, 4, WS_ST, 20 * S * 8); srd_ws(k, 60, 4, WS_CS, 16 * 3456 * 4)
    else:
        srd_ws(k, 40, 4, WS_HH, S * 3456); srd(k, 44, 's8', 's9', F * 1280); srd_ws(k, 48, 4, WS_H, S * 1280)
        srd(k, 52, 's10', 's11', S * 1280)
    k(f's_cmp_ge_u32 s35, 4\ns_cbranch_scc1 {Lload}')

    k('s_lshr_b32 s36, s35, 1\ns_and_b32 s37, s35, 1')
    k('v_and_b32 v2, 15, v0\nv_lshrrev_b32 v3, 4, v0')
    k(f's_mul_i32 s38, s36, {TT * 2048}')
    k('v_lshrrev_b32 v6, 1, v2')
    k('v_xor_b32 v7, v3, v6\nv_lshlrev_b32 v7, 4, v7\nv_lshl_add_u32 v4, v2, 7, v7\nv_add_u32 v4, s38, v4')
    k('v_xor_b32 v5, 64, v4')
    k('v_bfe_u32 v8, v0, 2, 3\nv_bfe_u32 v9, v0, 3, 2\nv_lshrrev_b32 v10, 5, v0')
    k('s_lshl_b32 s39, s37, 1')
    k('v_xor_b32 v9, s39, v9')
    k('v_and_b32 v11, 3, v0\nv_lshlrev_b32 v11, 3, v11')
    k('v_lshl_add_u32 v11, v8, 7, v11\nv_lshl_add_u32 v11, v10, 10, v11')
    k(f'v_add_u32 v11, {XB * 1024}, v11')
    k('v_lshl_add_u32 v6, v9, 5, v11\nv_xor_b32 v7, 32, v6')
    ADDR = [4, 5, 6, 7]
    NW = 2 * NL
    per_ks = TT + NW
    FB = 12
    setsz = U * per_ks * 4
    ACC = FB + 2 * setsz
    nacc = TT * NW
    def xf(st, u, tt): b = FB + st * setsz + (u * per_ks + tt) * 4; return b
    def wf(st, u, j): b = FB + st * setsz + (u * per_ks + TT + j) * 4; return b
    def acc(tt, j): return ACC + (tt * NW + j) * 4
    for i in range(nacc * 4): k(f'v_mov_b32 v{ACC + i}, 0')
    def reads(st, kss):
        out = []
        for u, ks in enumerate(kss):
            for j in range(NW):
                ln, jj = j // 2, j % 2
                b = wf(st, u, j)
                for i in range(2):
                    out.append(f'ds_read_b64_tr_b16 v[{b + 2*i}:{b + 2*i + 1}], v{6 + jj} offset:{ln * 8192 + ks * 4096 + i * 2048}')
            for tt in range(TT):
                b = xf(st, u, tt)
                out.append(f'ds_read_b128 v[{b}:{b+3}], v{4 + ks} offset:{tt * 2048}')
        return out
    def mfmas(st):
        out = []
        for u in range(U):
            for tt in range(TT):
                for j in range(NW):
                    a = acc(tt, j); w = wf(st, u, j); x = xf(st, u, tt)
                    out.append(f'v_mfma_f32_16x16x32_bf16 v[{a}:{a+3}], v[{w}:{w+3}], v[{x}:{x+3}], v[{a}:{a+3}]')
        return out
    def interleave(rd, mf):
        out = []; nr = len(rd); nm = len(mf)
        per = max(1, -(-nr // max(1, (nm * 3) // 4)))
        ri = 0
        for m in mf:
            for _ in range(per):
                if ri < nr: out.append(rd[ri]); ri += 1
            out.append(m)
        out += rd[ri:]
        return out
    def advance():
        k(f's_add_u32 s64, s64, 1\ns_cmp_eq_u32 s64, {SL}\ns_cselect_b32 s65, {-(SL - 1) * SLOT & 0xffffffff}, s74\ns_cselect_b32 s64, 0, s64')
        for a in ADDR: k(f'v_add_u32 v{a}, s65, v{a}')
    k('s_mov_b32 s64, 0')
    st()
    k('s_barrier')
    st()
    if U == 1:
        def stage(first):
            if first:
                for r in reads(0, [0]): k(r)
            else:
                for x in interleave(reads(0, [0]), mfmas(1)): k(x)
            k('s_waitcnt lgkmcnt(0)')
            for x in interleave(reads(1, [1]), mfmas(0)): k(x)
            advance()
            k('s_waitcnt lgkmcnt(0)\ns_barrier')
        stage(True)
        L = k.label('loop')
        k(f's_mov_b32 s66, {NST - 1}\n{L}:')
        stage(False)
        k(f's_sub_u32 s66, s66, 1\ns_cmp_lg_u32 s66, 0\ns_cbranch_scc1 {L}')
        for m in mfmas(1): k(m)
    else:
        def stage(st, first):
            if first:
                for r in reads(st, [0, 1]): k(r)
            else:
                for x in interleave(reads(st, [0, 1]), mfmas(1 - st)): k(x)
            advance()
            k('s_waitcnt lgkmcnt(0)\ns_barrier')
        stage(0, True)
        rem = NST - 1
        last = 0
        if rem % 2 == 1:
            stage(1, False); rem -= 1; a, b = 0, 1
        else:
            a, b = 1, 0
        L = k.label('loop')
        k(f's_mov_b32 s66, {rem // 2}\n{L}:')
        stage(a, False); stage(b, False)
        k(f's_sub_u32 s66, s66, 1\ns_cmp_lg_u32 s66, 0\ns_cbranch_scc1 {L}')
        last = b
        for m in mfmas(last): k(m)

    st()
    T = FB
    OP = 3456 if kind == 'k3' else 1280
    k('v_and_b32 v8, 1, v3\nv_lshlrev_b32 v8, 5, v8\nv_lshrrev_b32 v9, 1, v3\nv_lshl_add_u32 v8, v9, 4, v8')
    k(f's_lshl_b32 s39, s37, 6\ns_add_u32 s39, s39, s34\nv_add_u32 v8, s39, v8')
    k(f's_mul_i32 s38, s36, {TT * 16}\nv_add_u32 v9, s38, v2')
    k(f'v_add_u32 v10, s33, v9\ns_mov_b32 s38, {OP}\nv_mul_lo_u32 v10, v10, s38\nv_add_u32 v10, v10, v8')
    if kind in ('k2', 'k4'):
        k('v_lshrrev_b32 v11, 1, v2')
        k('v_lshrrev_b32 v8, 1, v3\ns_lshl_b32 s39, s37, 2\nv_add_u32 v8, s39, v8\nv_xor_b32 v8, v8, v11\nv_lshlrev_b32 v8, 4, v8')
        k('v_and_b32 v11, 1, v3\nv_lshl_add_u32 v8, v11, 3, v8\nv_lshl_add_u32 v8, v9, 7, v8')
        k(f'v_add_u32 v8, {MISC}, v8\nv_xor_b32 v11, 32, v8')
        R = T
        for tt in range(TT):
            k(f'ds_read_b64 v[{R + 4*tt}:{R + 4*tt + 1}], v8 offset:{tt * 2048}')
            k(f'ds_read_b64 v[{R + 4*tt + 2}:{R + 4*tt + 3}], v11 offset:{tt * 2048}')
        k('s_waitcnt lgkmcnt(0)')
        P = T + 16
        Q = T + 32
        k(f'v_mov_b32 v{Q+8}, 0x3f803f80')
        for tt in range(TT):
            for j in range(2):
                a = acc(tt, j)
                for h in range(2):
                    r = R + 4*tt + 2*j + h
                    k(f'v_lshlrev_b32 v{Q}, 16, v{r}\nv_and_b32 v{Q+1}, 0xffff0000, v{r}')
                    k(f'v_add_f32 v{Q}, v{Q}, v{a + 2*h}\nv_add_f32 v{Q+1}, v{Q+1}, v{a + 2*h + 1}')
                    k(f'v_cvt_pk_bf16_f32 v{P + 4*tt + 2*j + h}, v{Q}, v{Q+1}')
            if kind == 'k2':
                sm, sq = Q + 2 + 2*tt, Q + 3 + 2*tt
                k(f'v_mov_b32 v{sm}, 0\nv_mov_b32 v{sq}, 0')
                for i in range(4):
                    k(f'v_dot2c_f32_bf16 v{sm}, v{P + 4*tt + i}, v{Q+8}')
                for i in range(4):
                    k(f'v_dot2c_f32_bf16 v{sq}, v{P + 4*tt + i}, v{P + 4*tt + i}')
            k(f'v_permlane16_swap_b32 v{P + 4*tt}, v{P + 4*tt + 2}\nv_permlane16_swap_b32 v{P + 4*tt + 1}, v{P + 4*tt + 3}')
            k(f'v_add_u32 v{Q+9}, {tt * 16}, v9\nv_cmp_gt_u32 vcc, {RB}, v{Q+9}')
            k(f'v_add_u32 v{Q+9}, {tt * 16 * OP}, v10\nv_mov_b32 v{Q+10}, {OOB}\nv_cndmask_b32 v{Q+9}, v{Q+10}, v{Q+9}, vcc')
            k(f'buffer_store_dwordx4 v[{P + 4*tt}:{P + 4*tt + 3}], v{Q+9}, s[52:55], 0 offen')
            if kind == 'k2':
                k(f'v_permlane32_swap_b32 v{sm}, v{sq}\nv_add_f32 v{sm}, v{sm}, v{sq}\nv_mov_b32 v{sq}, v{sm}')
                k(f'v_permlane16_swap_b32 v{sm}, v{sq}\nv_add_f32 v{sm}, v{sm}, v{sq}')
                k(f's_lshl_b32 s38, s31, 1\ns_add_u32 s38, s38, s37\ns_lshl_b32 s38, s38, 14\ns_lshl_b32 s39, s33, 3\ns_add_u32 s38, s38, s39')
                k(f'v_add_u32 v{Q+11}, {tt * 16}, v9\nv_lshlrev_b32 v{Q+12}, 3, v{Q+11}\nv_lshrrev_b32 v{Q+13}, 1, v3\nv_lshl_add_u32 v{Q+12}, v{Q+13}, 2, v{Q+12}')
                k(f'v_add_u32 v{Q+13}, s33, v{Q+11}\nv_cmp_gt_u32 s[68:69], s75, v{Q+13}\ns_and_b64 vcc, vcc, s[68:69]')
                k(f'v_and_b32 v{Q+13}, 1, v3\nv_cmp_eq_u32 s[68:69], 0, v{Q+13}\ns_and_b64 vcc, vcc, s[68:69]')
                k(f'v_cndmask_b32 v{Q+12}, v{Q+10}, v{Q+12}, vcc')
                k(f'buffer_store_dword v{sm}, v{Q+12}, s[56:59], s38 offen')
    else:
        CS = T
        k(f'v_lshlrev_b32 v8, 4, v3\ns_lshl_b32 s39, s37, 7\nv_add_u32 v8, s39, v8\nv_add_u32 v8, {MISC + 2048}, v8')
        for j in range(4):
            ln, jj = j // 2, j % 2
            k(f'ds_read_b128 v[{CS + 4*j}:{CS + 4*j + 3}], v8 offset:{ln * 256 + jj * 64}')
        STt = T + 16
        k(f'v_lshlrev_b32 v11, 3, v9\nv_add_u32 v11, {MISC}, v11')
        for tt in range(TT):
            k(f'ds_read_b64 v[{STt + 2*tt}:{STt + 2*tt + 1}], v11 offset:{tt * 128}')
        k('s_waitcnt lgkmcnt(0)')
        Q = T + 32
        import math
        c1 = -2.0 * math.sqrt(2.0 / math.pi) * math.log2(math.e)
        c2 = c1 * 0.044715
        import struct
        f2u = lambda f: struct.unpack('<I', struct.pack('<f', f))[0]
        k(f's_mov_b32 s70, {f2u(c1)}\ns_mov_b32 s71, {f2u(c2)}')
        for tt in range(TT):
            mean, rstd = STt + 2*tt, STt + 2*tt + 1
            P = Q + 24 + 4 * (tt % 2)
            for jj in range(2):
                g = acc(tt, jj); u = acc(tt, 2 + jj)
                for r in range(4):
                    a, b, c = Q + 3*r, Q + 3*r + 1, Q + 3*r + 2
                    k(f'v_fma_f32 v{a}, -v{mean}, v{CS + 4*jj + r}, v{g + r}')
                    k(f'v_fma_f32 v{b}, -v{mean}, v{CS + 8 + 4*jj + r}, v{u + r}')
                    k(f'v_mul_f32 v{a}, v{rstd}, v{a}\nv_mul_f32 v{b}, v{rstd}, v{b}')
                    k(f'v_mul_f32 v{c}, v{a}, v{a}')
                    k(f'v_mov_b32 v{Q+12}, s70\nv_fma_f32 v{c}, v{c}, s71, v{Q+12}')
                    k(f'v_mul_f32 v{c}, v{c}, v{a}')
                    k(f'v_exp_f32 v{c}, v{c}')
                    k(f'v_mul_f32 v{a}, v{a}, v{b}')
                    k(f'v_add_f32 v{c}, 1.0, v{c}')
                    k(f'v_rcp_f32 v{c}, v{c}')
                for r in range(4):
                    a, c = Q + 3*r, Q + 3*r + 2
                    k(f'v_mul_f32 v{a}, v{a}, v{c}')
                k(f'v_cvt_pk_bf16_f32 v{P + 2*jj}, v{Q}, v{Q+3}\nv_cvt_pk_bf16_f32 v{P + 2*jj + 1}, v{Q+6}, v{Q+9}')
            k(f'v_permlane16_swap_b32 v{P}, v{P+2}\nv_permlane16_swap_b32 v{P+1}, v{P+3}')
            k(f'v_add_u32 v{Q+13}, {tt * 16 * OP}, v10')
            k(f'buffer_store_dwordx4 v[{P}:{P+3}], v{Q+13}, s[52:55], 0 offen')
    st()
    st.dump(0, 35)
    k('s_endpgm')

    k(f'{Lload}:')
    st.n = 1
    k('s_sub_u32 s35, s35, 4')
    k('v_lshrrev_b32 v1, 3, v0\nv_and_b32 v2, 7, v0\nv_lshrrev_b32 v3, 4, v0')
    k('s_and_b32 s36, s35, 1\ns_lshl_b32 s36, s36, 2\nv_add_u32 v3, s36, v3\nv_xor_b32 v3, v2, v3\nv_lshlrev_b32 v3, 4, v3')
    k('s_lshl_b32 s36, s35, 3\nv_add_u32 v20, s36, v1')
    k(f's_mov_b32 s37, {XP}\nv_mov_b32 v21, {OOB}')
    for i in range(nX):
        k(f'v_add_u32 v22, {32 * i}, v20\nv_add_u32 v23, s33, v22\nv_mul_lo_u32 v23, v23, s37\nv_add_u32 v{4 + i}, v23, v3')
        if RB % 32 != 0 or True:
            k(f'v_cmp_gt_u32 vcc, {RB}, v22\nv_cndmask_b32 v{4 + i}, v21, v{4 + i}, vcc')
    if kind in ('k2', 'k4'):
        k('s_mov_b32 s37, 1280')
        for i in range(3):
            k(f'v_add_u32 v22, {32 * i}, v20\nv_add_u32 v23, s33, v22\nv_mul_lo_u32 v23, v23, s37\nv_add_u32 v{14 + i}, v23, v3\nv_add_u32 v{14+i}, s34, v{14+i}')
            k(f'v_cmp_gt_u32 vcc, {RB}, v22\nv_cndmask_b32 v{14 + i}, v21, v{14 + i}, vcc')
    k('v_lshrrev_b32 v22, 5, v0\nv_lshlrev_b32 v22, 3, v22\nv_and_b32 v23, 3, v1\nv_add_u32 v22, v22, v23')
    k('s_lshr_b32 s36, s35, 1\ns_lshl_b32 s36, s36, 5\ns_and_b32 s37, s35, 1\ns_lshl_b32 s37, s37, 2\ns_add_u32 s36, s36, s37\nv_add_u32 v22, s36, v22')
    k(f's_mov_b32 s37, {WP}\nv_mul_lo_u32 v22, v22, s37')
    k('v_lshrrev_b32 v23, 4, v0\nv_lshlrev_b32 v23, 1, v23\nv_xor_b32 v23, v2, v23\nv_lshl_add_u32 v12, v23, 4, v22\nv_add_u32 v12, s34, v12')
    k(f'v_add_u32 v13, {16 * WP}, v12')
    k(f's_lshl_b32 s64, s35, 10\ns_lshl_b32 s65, s35, 11\ns_add_u32 s65, s65, {XB * 1024}\ns_mov_b32 s66, s32\ns_mov_b32 s69, 0')
    def issue():
        k(f's_lshl_b32 s67, s66, 7\ns_mul_i32 s68, s66, {64 * WP}')
        for ln in range(NL):
            for g1 in range(2):
                k(f's_add_u32 m0, s65, {ln * 8192 + g1 * 1024}')
                k(f'buffer_load_dwordx4 v{12 + g1}, s[{44 + 4*ln}:{47 + 4*ln}], s68 offen lds')
        for i in range(nX):
            k(f's_add_u32 m0, s64, {i * 4096}')
            k(f'buffer_load_dwordx4 v{4 + i}, s[40:43], s67 offen lds')
        k(f's_add_u32 s66, s66, 1\ns_cmp_eq_u32 s66, {NST}\ns_cselect_b32 s66, 0, s66')
        k(f's_add_u32 s69, s69, 1\ns_cmp_eq_u32 s69, {SL}\ns_cselect_b32 s70, {-(SL - 1) * SLOT & 0xffffffff}, s74\ns_cselect_b32 s69, 0, s69')
        k('s_add_u32 s64, s64, s70\ns_add_u32 s65, s65, s70')
    st()
    Lp = k.label('lpro')
    k(f's_mov_b32 s71, {SL}\n{Lp}:')
    issue()
    k(f's_sub_u32 s71, s71, 1\ns_cmp_lg_u32 s71, 0\ns_cbranch_scc1 {Lp}')
    st()
    k(f's_waitcnt vmcnt({(SL - 1) * nD})')
    st()
    k('s_barrier')
    k(f's_waitcnt vmcnt({(SL - 2) * nD})\ns_barrier')
    nsteady = NST - SL
    if nsteady > 0:
        Ls = k.label('lsteady')
        k(f's_mov_b32 s71, {nsteady}\n{Ls}:')
        issue()
        k(f's_waitcnt vmcnt({(SL - 2) * nD})\ns_barrier')
        k(f's_sub_u32 s71, s71, 1\ns_cmp_lg_u32 s71, 0\ns_cbranch_scc1 {Ls}')
    st()
    if kind in ('k2', 'k4'):
        k('s_lshl_b32 s72, s35, 10')
        for i in range(3):
            k(f's_add_u32 m0, s72, {MISC + i * 4096}')
            k(f'buffer_load_dwordx4 v{14 + i}, s[48:51], 0 offen lds')
        nextra = 3
    else:
        k('s_lshl_b32 s72, s35, 6\ns_add_u32 s72, s72, s33\nv_add_u32 v20, s72, v0\nv_lshlrev_b32 v20, 3, v20')
        for p in range(20):
            k(f's_mov_b32 s73, {p * 16384}\nbuffer_load_dwordx2 v[{24 + 2*p}:{25 + 2*p}], v20, s[56:59], s73 offen')
        k('v_and_b32 v21, 31, v0\ns_and_b32 s72, s35, 1\ns_lshl_b32 s72, s72, 5\ns_lshr_b32 s73, s35, 1\ns_mul_i32 s73, s73, 1728\ns_add_u32 s72, s72, s73\ns_lshl_b32 s73, s31, 6\ns_add_u32 s72, s72, s73')
        k('v_add_u32 v21, s72, v21\nv_lshlrev_b32 v21, 2, v21')
        for p in range(16):
            k(f's_mov_b32 s73, {p * 3456 * 4}\nbuffer_load_dword v{64 + p}, v21, s[60:63], s73 offen')
        nextra = 36
    for s in range(max(1, NST - SL + 1), NST):
        if s < NST - 1:
            k(f's_waitcnt vmcnt({(NST - 2 - s) * nD + nextra})\ns_barrier')
        else:
            k('s_waitcnt vmcnt(0)')
            if kind == 'k3':
                for p in range(1, 20):
                    k(f'v_add_f32 v24, v24, v{24 + 2*p}\nv_add_f32 v25, v25, v{25 + 2*p}')
                import struct
                f2u = lambda f: struct.unpack('<I', struct.pack('<f', f))[0]
                k(f'v_mul_f32 v24, {f2u(1.0/640)}, v24\nv_mul_f32 v25, {f2u(1.0/640)}, v25')
                k('v_fma_f32 v25, -v24, v24, v25\nv_max_f32 v25, 0, v25')
                k(f'v_add_f32 v25, {f2u(1e-5)}, v25\nv_rsq_f32 v25, v25')
                k(f's_lshl_b32 s72, s35, 9\nv_lshlrev_b32 v20, 3, v0\nv_add_u32 v20, s72, v20\nv_add_u32 v20, {MISC}, v20')
                k('ds_write_b64 v20, v[24:25]')
                for p in range(1, 16): k(f'v_add_f32 v64, v64, v{64 + p}')
                k(f'v_and_b32 v21, 31, v0\nv_lshlrev_b32 v21, 2, v21\ns_lshl_b32 s72, s35, 7\nv_add_u32 v21, s72, v21\nv_add_u32 v21, {MISC + 2048}, v21')
                k('ds_write_b32 v21, v64\ns_waitcnt lgkmcnt(0)')
            k('s_barrier')
    st.dump(4, 35)
    k(f'{Lend}:\ns_endpgm')
    k.fix_hazards_fast()
    errs = k.check_waits()
    if errs: print(name, 'WAIT ERRS', errs[:10])
    return k, (name, NWG, 512, LDS)
```

```python
from asmlib import *
from layout import *
from gemm import srd, srd_ws, sdiv, Stamps, OOB
import math, struct
f2u = lambda f: struct.unpack('<I', struct.pack('<f', f))[0]
LOG2E = math.log2(math.e)

SLOT = 20480; NSL = 7
XB = 3 * SLOT
MISC_W = NSL * SLOT
MISC_Z = MISC_W + 3200
PHI = 1 * SLOT
VV = 2 * SLOT
LDS1 = MISC_W + 4096

def tile_map(k):
    k('s_and_b32 s20, s2, 7\ns_lshr_b32 s21, s2, 3')
    k('s_and_b32 s22, s20, 3\ns_lshl_b32 s22, s22, 3\ns_and_b32 s23, s21, 7\ns_add_u32 s30, s22, s23')
    k('s_lshr_b32 s22, s20, 2\ns_lshl_b32 s22, s22, 2\ns_lshr_b32 s24, s21, 3\ns_add_u32 s31, s22, s24')
    k('s_lshl_b32 s24, s24, 1\ns_add_u32 s32, s23, s24\ns_cmp_ge_u32 s32, 10\ns_cselect_b32 s24, 10, 0\ns_sub_u32 s32, s32, s24')

def red_g(k, v, t):
    k(f'v_mov_b32 v{t}, v{v}\nv_permlane32_swap_b32 v{v}, v{t}\nv_add_f32 v{v}, v{v}, v{t}')
    k(f'v_mov_b32 v{t}, v{v}\nv_permlane16_swap_b32 v{v}, v{t}\nv_add_f32 v{v}, v{v}, v{t}')

def feature_map(k, ACC, RSTD, QB, WPH, P, EP, EM, OUTP, T):
    for i in range(10):
        k(f'v_mul_f32 v{T}, v{RSTD}, v{ACC + 2*i}\nv_mul_f32 v{T+1}, v{RSTD}, v{ACC + 2*i + 1}\nv_cvt_pk_bf16_f32 v{QB + i}, v{T}, v{T+1}')
    k(f'v_mov_b32 v{QB + 10}, 0\nv_mov_b32 v{QB + 11}, 0')
    for s in range(3):
        for i in range(5):
            w = WPH + (i * 3 + s) * 4; p = P + 4 * i; b = QB + 4 * s
            c = '0' if s == 0 else f'v[{p}:{p+3}]'
            k(f'v_mfma_f32_16x16x32_bf16 v[{p}:{p+3}], v[{w}:{w+3}], v[{b}:{b+3}], {c}')
    mx, mn = T, T + 1
    k(f'v_max3_f32 v{mx}, v{P}, v{P+1}, v{P+2}\nv_min3_f32 v{mn}, v{P}, v{P+1}, v{P+2}')
    for i in range(3, 19, 2):
        k(f'v_max3_f32 v{mx}, v{mx}, v{P+i}, v{P+i+1}\nv_min3_f32 v{mn}, v{mn}, v{P+i}, v{P+i+1}')
    k(f'v_max_f32 v{mx}, v{mx}, v{P+19}\nv_min_f32 v{mn}, v{mn}, v{P+19}')
    k(f's_mov_b32 s70, {f2u(LOG2E)}')
    k(f'v_mul_f32 v{mx}, s70, v{mx}\nv_mul_f32 v{mn}, s70, v{mn}')
    for i in range(20):
        k(f'v_fma_f32 v{EP+i}, v{P+i}, s70, -v{mx}\nv_fma_f32 v{EM+i}, -v{P+i}, s70, v{mn}')
    for i in range(20):
        k(f'v_exp_f32 v{EP+i}, v{EP+i}\nv_exp_f32 v{EM+i}, v{EM+i}')
    sp, sm = T + 2, T + 3
    k(f'v_add_f32 v{sp}, v{EP}, v{EP+1}\nv_add_f32 v{sm}, v{EM}, v{EM+1}')
    for i in range(2, 20):
        k(f'v_add_f32 v{sp}, v{sp}, v{EP+i}\nv_add_f32 v{sm}, v{sm}, v{EM+i}')
    k(f'v_rcp_f32 v{sp}, v{sp}\nv_rcp_f32 v{sm}, v{sm}')
    for i in range(20):
        k(f'v_mul_f32 v{EP+i}, v{sp}, v{EP+i}\nv_mul_f32 v{EM+i}, v{sm}, v{EM+i}')
    for i in range(10):
        k(f'v_cvt_pk_bf16_f32 v{OUTP+i}, v{EP+2*i}, v{EP+2*i+1}\nv_cvt_pk_bf16_f32 v{OUTP+10+i}, v{EM+2*i}, v{EM+2*i+1}')

def k1a_kernel(name, stamps=False):
    k = Kernel(name)
    Lend = k.label('end'); Lload = k.label('loader')
    k(f's_cmp_ge_u32 s2, 256\ns_cbranch_scc1 {Lend}')
    st = Stamps(k, stamps, 3); st()
    k(f's_load_dwordx2 s[4:5], s[0:1], {WS}\ns_load_dwordx4 s[8:11], s[0:1], {A_X}\ns_load_dwordx2 s[12:13], s[0:1], {A_WPHI}\ns_load_dwordx4 s[16:19], s[0:1], {B_WG}')
    tile_map(k)
    k('v_lshrrev_b32 v1, 6, v0\nv_and_b32 v0, 63, v0\nv_readfirstlane_b32 s35, v1')
    k('s_waitcnt lgkmcnt(0)')
    srd(k, 40, 's8', 's9', S * 1280)
    srd(k, 44, 's10', 's11', D * 3840)
    srd(k, 48, 's12', 's13', 32 * 800)
    srd_ws(k, 52, 4, WS_PHIQ, 32 * 8 * 4 * 5 * 1024)
    srd_ws(k, 56, 4, WS_KVP, 256 * KVP_STRIDE)
    srd_ws(k, 60, 4, WS_CS, 16 * 3456 * 4)
    k(f's_cmp_ge_u32 s35, 4\ns_cbranch_scc1 {Lload}')

    XR = 16; WB = 96; WPH = 136; AK = 196; AV = 216; AQ = 236
    k('v_and_b32 v2, 15, v0\nv_lshrrev_b32 v3, 4, v0')
    k('v_lshrrev_b32 v8, 1, v2\nv_xor_b32 v8, v3, v8\nv_lshlrev_b32 v8, 4, v8\nv_lshl_add_u32 v4, v2, 7, v8')
    k(f's_lshl_b32 s36, s35, 11\ns_add_u32 s36, s36, {XB}\nv_add_u32 v4, s36, v4\nv_xor_b32 v5, 64, v4')
    k(f'v_add_u32 v6, {5 * 8192}, v4\nv_add_u32 v7, {5 * 8192}, v5')
    k('v_lshrrev_b32 v11, 5, v0\nv_lshlrev_b32 v11, 4, v11\nv_bfe_u32 v12, v0, 4, 1\nv_lshl_add_u32 v11, v12, 2, v11\nv_bfe_u32 v12, v0, 2, 2\nv_add_u32 v11, v11, v12')
    k('v_mul_u32_u24 v11, 160, v11\nv_and_b32 v12, 3, v0\nv_mul_u32_u24 v12, 40, v12\nv_add_u32 v8, v11, v12')
    k(f'v_add_u32 v9, {3 * SLOT}, v8\nv_add_u32 v10, {6 * SLOT}, v8')
    st()
    k('s_barrier')
    st()
    for ks in range(20):
        ln, ksl = ks // 2, ks % 2
        a = (4 if ln < 5 else 6) + ksl
        k(f'ds_read_b128 v[{XR + 4*ks}:{XR + 4*ks + 3}], v{a} offset:{(ln % 5) * 8192}')
    k('s_waitcnt lgkmcnt(0)\ns_barrier')
    T = WB
    k(f'v_mov_b32 v11, 0x3f803f80')
    for i in range(4): k(f'v_mov_b32 v{T+i}, 0')
    for i in range(80): k(f'v_dot2c_f32_bf16 v{T + i % 4}, v{XR+i}, v11')
    k(f'v_add_f32 v{T}, v{T}, v{T+1}\nv_add_f32 v{T+2}, v{T+2}, v{T+3}\nv_add_f32 v{T}, v{T}, v{T+2}')
    red_g(k, T, T + 1)
    k(f'v_mul_f32 v12, {f2u(-1.0/640)}, v{T}\nv_mov_b32 v13, v12')
    for i in range(80):
        a = T + 4 + 2 * (i % 4)
        k(f'v_lshlrev_b32 v{a}, 16, v{XR+i}\nv_and_b32 v{a+1}, 0xffff0000, v{XR+i}\nv_pk_add_f32 v[{a}:{a+1}], v[{a}:{a+1}], v[12:13]\nv_cvt_pk_bf16_f32 v{XR+i}, v{a}, v{a+1}')
    for i in range(4): k(f'v_mov_b32 v{T+i}, 0')
    for i in range(80): k(f'v_dot2c_f32_bf16 v{T + i % 4}, v{XR+i}, v{XR+i}')
    k(f'v_add_f32 v{T}, v{T}, v{T+1}\nv_add_f32 v{T+2}, v{T+2}, v{T+3}\nv_add_f32 v{T}, v{T}, v{T+2}')
    red_g(k, T, T + 1)
    k(f'v_mov_b32 v13, {f2u(1e-5)}\nv_mov_b32 v12, {f2u(1.0/640)}\nv_fma_f32 v14, v{T}, v12, v13\nv_rsq_f32 v14, v14')
    RSTD = 14
    st()
    def waddr(slot):
        return (8 + slot // 3, (slot % 3) * SLOT)
    def rdA(buf, stage, ksl):
        a, off = waddr(stage % NSL); out = []
        for sg in range(2):
            for i_n in range(5):
                b = WB + buf * 40 + (sg * 5 + i_n) * 4
                for i in range(2):
                    out.append(f'ds_read_b64_tr_b16 v[{b+2*i}:{b+2*i+1}], v{a} offset:{off + (ksl*2+sg)*5120 + i*1280 + i_n*8}')
        return out
    def mfA(buf, ks):
        out = []
        for sg in range(2):
            for i_n in range(5):
                b = WB + buf * 40 + (sg * 5 + i_n) * 4; a = (AK if sg == 0 else AV) + 4 * i_n; x = XR + 4 * ks
                c = '0' if ks == 0 else f'v[{a}:{a+3}]'
                out.append(f'v_mfma_f32_16x16x32_bf16 v[{a}:{a+3}], v[{b}:{b+3}], v[{x}:{x+3}], {c}')
        return out
    def inter(rd, mf):
        out = []; per = -(-len(rd) // len(mf)); ri = 0
        for m in mf:
            out += rd[ri:ri+per]; ri += per; out.append(m)
        return out + rd[ri:]
    for s in range(10):
        if s == 0:
            for r in rdA(0, 0, 0): k(r)
        else:
            for x in inter(rdA(0, s, 0), mfA(1, 2*s - 1)): k(x)
        k('s_waitcnt lgkmcnt(0)')
        for x in inter(rdA(1, s, 1), mfA(0, 2*s)): k(x)
        k('s_waitcnt lgkmcnt(0)\ns_barrier')
    for m in mfA(1, 19): k(m)
    st()
    k('v_and_b32 v11, 3, v0\nv_cmp_eq_u32 vcc, v11, v3')
    k(f'v_mul_u32_u24 v11, 800, v3\nv_bfe_u32 v12, v0, 2, 2\nv_mul_u32_u24 v12, 40, v12\nv_add3_u32 v11, v11, v12, 0\nv_add_u32 v11, {MISC_W}, v11')
    k(f'v_mov_b32 v12, {MISC_Z}\nv_cndmask_b32 v11, v12, v11, vcc')
    for i in range(5):
        for s in range(3):
            w = WPH + (i * 3 + s) * 4
            for h in range(2):
                if s == 2 and h == 1:
                    k(f'v_mov_b32 v{w+2}, 0\nv_mov_b32 v{w+3}, 0')
                else:
                    k(f'ds_read_b64_tr_b16 v[{w+2*h}:{w+2*h+1}], v11 offset:{(8*s + 4*h) * 40 + 8*i}')
    VB = WB + 12
    for i in range(10):
        k(f'v_mul_f32 v12, v{RSTD}, v{AV + 2*i}\nv_mul_f32 v13, v{RSTD}, v{AV + 2*i + 1}\nv_cvt_pk_bf16_f32 v{VB + i}, v12, v13')
    k(f'v_mov_b32 v{VB+10}, 0x00003f80\nv_mov_b32 v{VB+11}, 0')
    k(f's_lshl_b32 s36, s35, 4\nv_add_u32 v15, s36, v2')
    k(f'v_mul_u32_u24 v12, 48, v15\nv_mul_u32_u24 v13, 3072, v3\nv_add3_u32 v12, v12, v13, 0\nv_add_u32 v12, {VV}, v12')
    for i in range(3): k(f'ds_write_b128 v12, v[{VB + 4*i}:{VB + 4*i + 3}] offset:{16*i}')
    k('s_waitcnt lgkmcnt(0)')
    feature_map(k, AK, RSTD, WB, WPH, AK, AV, AQ, WB, WB + 24)
    k(f'v_mul_u32_u24 v12, 80, v15\nv_mul_u32_u24 v13, 5120, v3\nv_add3_u32 v12, v12, v13, 0\nv_add_u32 v12, {PHI}, v12')
    for i in range(5): k(f'ds_write_b128 v12, v[{WB + 4*i}:{WB + 4*i + 3}] offset:{16*i}')
    k('s_waitcnt lgkmcnt(0)\ns_barrier')
    k('v_bfe_u32 v12, v0, 2, 2\nv_lshl_add_u32 v12, v3, 3, v12')
    k('v_and_b32 v13, 3, v0\nv_lshlrev_b32 v13, 3, v13')
    k(f's_mul_i32 s36, s35, 5120\ns_add_u32 s36, s36, {PHI}\ns_mul_i32 s37, s35, 3072\ns_add_u32 s37, s37, {VV}')
    k('v_mul_u32_u24 v11, 80, v12\nv_add3_u32 v11, v11, v13, s36\nv_mul_u32_u24 v12, 48, v12\nv_add3_u32 v12, v12, v13, s37')
    FA = WB; FBv = WB + 24
    for ks in range(2):
        for a in range(3):
            for i in range(2):
                b = FA + (ks * 3 + a) * 4 + 2 * i
                k(f'ds_read_b64_tr_b16 v[{b}:{b+1}], v11 offset:{(ks*32 + i*4) * 80 + a*32}')
        for bb in range(2):
            for i in range(2):
                b = FBv + (ks * 2 + bb) * 4 + 2 * i
                k(f'ds_read_b64_tr_b16 v[{b}:{b+1}], v12 offset:{(ks*32 + i*4) * 48 + bb*32}')
    k('s_waitcnt lgkmcnt(0)')
    KV = AK
    for ks in range(2):
        for a in range(3):
            for bb in range(2):
                d = KV + (a * 2 + bb) * 4; fa = FA + (ks*3 + a) * 4; fb = FBv + (ks*2 + bb) * 4
                c = '0' if ks == 0 else f'v[{d}:{d+3}]'
                k(f'v_mfma_f32_16x16x32_bf16 v[{d}:{d+3}], v[{fa}:{fa+3}], v[{fb}:{fb+3}], {c}')
    k(f's_lshl_b32 s36, s31, 5\ns_add_u32 s36, s36, s30\ns_mul_i32 s36, s36, {KVP_STRIDE}\ns_mul_i32 s37, s35, 1680\ns_add_u32 s36, s36, s37')
    k(f'v_mul_u32_u24 v11, 80, v2\nv_lshl_add_u32 v11, v3, 3, v11\nv_mov_b32 v13, {OOB}')
    k('v_cmp_gt_u32 vcc, 5, v2\nv_cndmask_b32 v12, v13, v11, vcc')
    k(f'v_cmp_gt_u32 vcc, 2, v3\nv_cndmask_b32 v15, v13, v11, vcc\nv_cndmask_b32 v13, v13, v12, vcc')
    for a in range(3):
        for bb in range(2):
            d = KV + (a * 2 + bb) * 4; p = AV + 4 + (a * 2 + bb) * 2
            k(f'v_cvt_pk_bf16_f32 v{p}, v{d}, v{d+1}\nv_cvt_pk_bf16_f32 v{p+1}, v{d+2}, v{d+3}')
            va = {(0, 0): 11, (0, 1): 12, (1, 0): 15, (1, 1): 13}[(1 if a == 2 else 0, bb)]
            k(f'buffer_store_dwordx2 v[{p}:{p+1}], v{va}, s[56:59], s36 offen offset:{bb*16*80 + a*32}')
    st()
    def rdB(buf, stage, u):
        a, off = waddr(stage % NSL); out = []
        for i_n in range(5):
            b = WB + buf * 20 + i_n * 4
            for i in range(2):
                out.append(f'ds_read_b64_tr_b16 v[{b+2*i}:{b+2*i+1}], v{a} offset:{off + u*5120 + i*1280 + i_n*8}')
        return out
    def mfB(buf, ks):
        out = []
        for i_n in range(5):
            b = WB + buf * 20 + i_n * 4; a = AQ + 4 * i_n; x = XR + 4 * ks
            c = '0' if ks == 0 else f'v[{a}:{a+3}]'
            out.append(f'v_mfma_f32_16x16x32_bf16 v[{a}:{a+3}], v[{b}:{b+3}], v[{x}:{x+3}], {c}')
        return out
    for ks in range(20):
        s = 10 + ks // 4; u = ks % 4
        if ks == 0:
            for r in rdB(0, s, u): k(r)
        else:
            for x in inter(rdB(ks % 2, s, u), mfB((ks - 1) % 2, ks - 1)): k(x)
        k('s_waitcnt lgkmcnt(0)')
        if u == 3 and s < 14: k('s_barrier')
    for m in mfB(1, 19): k(m)
    st()
    feature_map(k, AQ, RSTD, WB, WPH, AK, AV, XR, WB, WB + 24)
    k(f's_lshl_b32 s36, s30, 3\ns_add_u32 s36, s36, s31\ns_lshl_b32 s36, s36, 2\ns_add_u32 s36, s36, s35\ns_mul_i32 s36, s36, 5120')
    k('v_lshlrev_b32 v11, 4, v0')
    for s in range(4): k(f'buffer_store_dwordx4 v[{WB + 4*s}:{WB + 4*s + 3}], v11, s[52:55], s36 offen offset:{1024*s}')
    k(f's_add_u32 s36, s36, 4096\nbuffer_store_dwordx4 v[{WB + 16}:{WB + 19}], v11, s[52:55], s36 offen')
    st()
    st.dump(0, 35)
    k('s_endpgm')

    k(f'{Lload}:')
    st.n = 1
    k('s_sub_u32 s35, s35, 4')
    k('v_lshrrev_b32 v1, 3, v0\nv_and_b32 v2, 7, v0\nv_lshrrev_b32 v3, 4, v0')
    k('s_lshl_b32 s36, s30, 6\ns_lshl_b32 s37, s35, 4\ns_add_u32 s36, s36, s37\nv_add_u32 v20, s36, v1')
    k('v_mul_u32_u24 v20, 1280, v20\nv_xor_b32 v21, v2, v3\nv_lshl_add_u32 v4, v21, 4, v20')
    k(f'v_xor_b32 v21, 4, v21\nv_lshl_add_u32 v5, v21, 4, v20\nv_add_u32 v5, {8 * 1280}, v5')
    for i in range(5):
        k(f'v_add_u32 v20, {64*i}, v0\nv_mul_u32_u24 v21, 6554, v20\nv_lshrrev_b32 v21, 16, v21')
        k('v_mul_u32_u24 v22, 10, v21\nv_sub_u32 v22, v20, v22')
        k('v_and_b32 v23, 0x13, v21\nv_bfe_u32 v24, v21, 2, 1\nv_lshl_or_b32 v23, v24, 3, v23\nv_bfe_u32 v24, v21, 3, 1\nv_lshl_or_b32 v23, v24, 2, v23')
        k(f'v_mul_u32_u24 v23, 3840, v23\nv_lshl_add_u32 v{6+i}, v22, 4, v23')
    k(f's_lshl_b32 s36, s35, 6\nv_add_u32 v20, s36, v0\nv_cmp_gt_u32 vcc, 200, v20\nv_lshlrev_b32 v20, 4, v20\nv_mov_b32 v21, {OOB}\nv_cndmask_b32 v11, v21, v20, vcc')
    k(f's_mul_i32 s37, s31, 3200\ns_lshl_b32 s36, s35, 10\ns_add_u32 m0, s36, {MISC_W}')
    st()
    k('buffer_load_dwordx4 v11, s[48:51], s37 offen lds')
    k('s_lshl_b32 s64, s35, 11\ns_mov_b32 s66, s32')
    for j in range(10):
        k('s_lshl_b32 s67, s66, 7')
        for h in range(2):
            k(f's_add_u32 m0, s64, {XB + j*8192 + h*1024}\nbuffer_load_dwordx4 v{4+h}, s[40:43], s67 offen lds')
        k('s_add_u32 s66, s66, 1\ns_cmp_eq_u32 s66, 10\ns_cselect_b32 s66, 0, s66')
    k('s_mul_i32 s65, s35, 5120\ns_mul_i32 s69, s31, 160')
    k('s_and_b32 s68, s35, 1\ns_add_u32 s68, s68, 1\ns_mul_i32 s68, s68, 1280\ns_add_u32 s68, s68, s69')
    k('s_lshl_b32 s66, s32, 1\ns_lshr_b32 s67, s35, 1\ns_add_u32 s66, s66, s67')
    def issue(s):
        if s == 10:
            k('s_mov_b32 s68, s69\ns_lshl_b32 s66, s32, 1\ns_add_u32 s66, s66, s35\ns_cmp_ge_u32 s66, 20\ns_cselect_b32 s67, 20, 0\ns_sub_u32 s66, s66, s67')
        k(f's_mul_i32 s67, s66, {32 * 3840}\ns_add_u32 s67, s67, s68')
        for i in range(5):
            k(f's_add_u32 m0, s65, {(s % NSL) * SLOT + i*1024}\nbuffer_load_dwordx4 v{6+i}, s[44:47], s67 offen lds')
        step = 2 if s < 10 else 4
        k(f's_add_u32 s66, s66, {step}\ns_cmp_ge_u32 s66, 20\ns_cselect_b32 s67, 20, 0\ns_sub_u32 s66, s66, s67')
    for s in range(3): issue(s)
    k('s_waitcnt vmcnt(15)')
    st()
    k('s_barrier')
    k('s_waitcnt vmcnt(10)\ns_barrier')
    issued = 3
    for s in range(3, 7): issue(s)
    issued = 7
    for s in range(14):
        if s >= 1 and issued < 15: issue(issued); issued += 1
        k(f's_waitcnt vmcnt({(issued - (s + 2)) * 5})\ns_barrier')
        if s == 9:
            k('s_barrier')
    st()
    Lcs = k.label('nocs')
    k(f's_cmp_ge_u32 s2, 216\ns_cbranch_scc1 {Lcs}')
    k('s_lshr_b32 s36, s2, 2\ns_and_b32 s37, s2, 3')
    k('s_cmp_ge_u32 s36, 27\ns_cselect_b32 s72, s18, s16\ns_cselect_b32 s73, s19, s17\ns_cselect_b32 s38, 27, 0\ns_sub_u32 s38, s36, s38')
    k(f's_mov_b32 s74, {D * 3456}\ns_mov_b32 s75, 0x20000')
    k('s_mul_i32 s39, s37, 160\ns_mul_i32 s64, s35, 40\ns_add_u32 s39, s39, s64\ns_mul_i32 s39, s39, 3456\ns_lshl_b32 s38, s38, 7\ns_add_u32 s39, s39, s38')
    k('v_mul_u32_u24 v20, 3456, v1\nv_lshl_add_u32 v20, v2, 4, v20')
    for i in range(5):
        k(f'buffer_load_dwordx4 v[{24 + 4*i}:{27 + 4*i}], v20, s[72:75], s39 offen\ns_add_u32 s39, s39, {8 * 3456}')
    k('v_mov_b32 v21, 0x00003f80\nv_mov_b32 v22, 0x3f800000')
    for j in range(8): k(f'v_mov_b32 v{48 + j}, 0')
    k('s_waitcnt vmcnt(0)')
    for i in range(5):
        for j in range(4):
            k(f'v_dot2c_f32_bf16 v{48 + 2*j}, v{24 + 4*i + j}, v21\nv_dot2c_f32_bf16 v{49 + 2*j}, v{24 + 4*i + j}, v22')
    for j in range(8):
        k(f'v_add_f32_dpp v{48+j}, v{48+j}, v{48+j} row_ror:8 row_mask:0xf bank_mask:0xf')
        red_g(k, 48 + j, 60)
    k(f's_lshl_b32 s37, s37, 2\ns_add_u32 s37, s37, s35\ns_mul_i32 s37, s37, {3456 * 4}\ns_lshl_b32 s36, s36, 8\ns_add_u32 s37, s37, s36')
    k(f'v_lshlrev_b32 v20, 5, v0\nv_mov_b32 v21, {OOB}\nv_cmp_gt_u32 vcc, 8, v0\nv_cndmask_b32 v20, v21, v20, vcc')
    k('buffer_store_dwordx4 v[48:51], v20, s[60:63], s37 offen\nbuffer_store_dwordx4 v[52:55], v20, s[60:63], s37 offen offset:16')
    k(f'{Lcs}:')
    st.dump(4, 35)
    k(f'{Lend}:\ns_endpgm')
    k.fix_hazards_fast()
    errs = k.check_waits()
    if errs: print(name, 'WAIT ERRS', errs[:10])
    return k, (name, 256, 512, LDS1)

def k1b_kernel(name, stamps=False):
    k = Kernel(name)
    Lend = k.label('end')
    k(f's_cmp_ge_u32 s2, 256\ns_cbranch_scc1 {Lend}')
    k(f's_load_dwordx2 s[4:5], s[0:1], {WS}')
    tile_map(k)
    k('v_mov_b32 v4, v0\nv_lshrrev_b32 v1, 6, v0\nv_and_b32 v0, 63, v0\nv_readfirstlane_b32 s35, v1')
    k('s_waitcnt lgkmcnt(0)')
    srd_ws(k, 52, 4, WS_PHIQ, 32 * 8 * 4 * 5 * 1024)
    srd_ws(k, 56, 4, WS_KVP, 256 * KVP_STRIDE)
    srd_ws(k, 60, 4, WS_O, S * 1280)
    RED = 0; KVT = 4 * 7 * 2048; ZER = KVT + 7168
    LDS = ZER + 2048
    k('v_and_b32 v2, 15, v0\nv_lshrrev_b32 v3, 4, v0\nv_lshlrev_b32 v5, 4, v0')
    PQ = 8
    k(f's_lshl_b32 s36, s30, 3\ns_add_u32 s36, s36, s31\ns_lshl_b32 s36, s36, 2\ns_add_u32 s36, s36, s35\ns_mul_i32 s36, s36, 5120')
    for s in range(4): k(f'buffer_load_dwordx4 v[{PQ + 4*s}:{PQ + 4*s + 3}], v5, s[52:55], s36 offen offset:{1024*s}')
    k(f's_add_u32 s36, s36, 4096\nbuffer_load_dwordx4 v[{PQ + 16}:{PQ + 19}], v5, s[52:55], s36 offen')
    k('v_mov_b32 v28, 0\nv_mov_b32 v29, 0\nv_lshlrev_b32 v6, 3, v4')
    k(f'ds_write_b64 v6, v[28:29] offset:{ZER}')
    AC = 32; LD = 88
    for i in range(56): k(f'v_mov_b32 v{AC+i}, 0')
    k('v_mov_b32 v30, 0x00003f80\nv_mov_b32 v31, 0x3f800000')
    k(f's_lshl_b32 s36, s31, 5\ns_lshl_b32 s37, s35, 3\ns_add_u32 s36, s36, s37\ns_mul_i32 s36, s36, {KVP_STRIDE}')
    def ld(p):
        b = LD + (p % 2) * 28
        for i in range(7):
            o = i * 1024
            if i == 4: k('s_add_u32 s37, s36, 4096')
            k(f'buffer_load_dwordx4 v[{b + 4*i}:{b + 4*i + 3}], v5, s[56:59], {"s36" if i < 4 else "s37"} offen offset:{o % 4096}')
        k(f's_add_u32 s36, s36, {KVP_STRIDE}')
    ld(0)
    for p in range(8):
        if p < 7: ld(p + 1)
        k(f's_waitcnt vmcnt({7 if p < 7 else 0})')
        b = LD + (p % 2) * 28
        for i in range(28):
            k(f'v_dot2c_f32_bf16 v{AC + 2*i}, v{b+i}, v30\nv_dot2c_f32_bf16 v{AC + 2*i + 1}, v{b+i}, v31')
    k(f's_mul_i32 s36, s35, {7 * 2048}\nv_lshlrev_b32 v6, 5, v0\nv_add_u32 v6, s36, v6')
    for i in range(7):
        k(f'ds_write_b128 v6, v[{AC + 8*i}:{AC + 8*i + 3}] offset:{i*2048}\nds_write_b128 v6, v[{AC + 8*i + 4}:{AC + 8*i + 7}] offset:{i*2048 + 16}')
    k('s_waitcnt lgkmcnt(0)\ns_barrier')
    k('v_lshlrev_b32 v6, 5, v4\nv_lshlrev_b32 v7, 4, v4')
    for half in range(2):
        if half == 1:
            k('v_cmp_gt_u32 vcc, 192, v4\ns_and_saveexec_b64 s[64:65], vcc')
        for w in range(4):
            k(f'ds_read_b128 v[{LD + 8*w}:{LD + 8*w + 3}], v6 offset:{w*14336 + half*8192}\nds_read_b128 v[{LD + 8*w + 4}:{LD + 8*w + 7}], v6 offset:{w*14336 + half*8192 + 16}')
        k('s_waitcnt lgkmcnt(0)')
        for j in range(8):
            k(f'v_add_f32 v{LD+j}, v{LD+j}, v{LD+8+j}\nv_add_f32 v{LD+16+j}, v{LD+16+j}, v{LD+24+j}\nv_add_f32 v{LD+j}, v{LD+j}, v{LD+16+j}')
        for j in range(4): k(f'v_cvt_pk_bf16_f32 v{LD+32+j}, v{LD+2*j}, v{LD+2*j+1}')
        k(f'ds_write_b128 v7, v[{LD+32}:{LD+35}] offset:{KVT + half*4096}')
        if half == 1:
            k('s_mov_b64 exec, s[64:65]')
    k('s_waitcnt lgkmcnt(0)\ns_barrier')
    AF = 32
    k('v_lshrrev_b32 v6, 2, v2\nv_cmp_eq_u32 vcc, v6, v3')
    k(f'v_mul_u32_u24 v6, 1680, v3\nv_and_b32 v7, 3, v0\nv_mul_u32_u24 v7, 80, v7\nv_add3_u32 v6, v6, v7, 0\nv_add_u32 v6, {KVT}, v6\nv_mov_b32 v7, {ZER}\nv_cndmask_b32 v6, v7, v6, vcc')
    for i in range(6):
        for s in range(5):
            b = AF + (i * 5 + s) * 4
            k(f'ds_read_b128 v[{b}:{b+3}], v6 offset:{i*320 + s*16}')
    k('s_waitcnt lgkmcnt(0) vmcnt(0)')
    O = 152
    for s in range(5):
        for i in range(6):
            b = AF + (i * 5 + s) * 4; d = O + 4 * i
            c = '0' if s == 0 else f'v[{d}:{d+3}]'
            k(f'v_mfma_f32_16x16x32_bf16 v[{d}:{d+3}], v[{b}:{b+3}], v[{PQ + 4*s}:{PQ + 4*s + 3}], {c}')
    k(f'v_add_f32 v6, {f2u(1e-6)}, v{O+20}\nv_rcp_f32 v6, v6')
    for i in range(10):
        k(f'v_mul_f32 v{O+2*i}, v6, v{O+2*i}\nv_mul_f32 v{O+2*i+1}, v6, v{O+2*i+1}\nv_cvt_pk_bf16_f32 v{8+i}, v{O+2*i}, v{O+2*i+1}')
    k('s_lshl_b32 s36, s30, 6\ns_lshl_b32 s37, s35, 4\ns_add_u32 s36, s36, s37\ns_mul_i32 s36, s36, 1280\ns_mul_i32 s37, s31, 160\ns_add_u32 s36, s36, s37')
    k('v_mul_u32_u24 v6, 1280, v2\nv_mul_u32_u24 v7, 40, v3\nv_add_u32 v6, v6, v7')
    k('buffer_store_dwordx4 v[8:11], v6, s[60:63], s36 offen\nbuffer_store_dwordx4 v[12:15], v6, s[60:63], s36 offen offset:16\nbuffer_store_dwordx2 v[16:17], v6, s[60:63], s36 offen offset:32')
    k(f'{Lend}:\ns_endpgm')
    k.fix_hazards_fast()
    errs = k.check_waits()
    if errs: print(name, 'WAIT ERRS', errs[:10])
    return k, (name, 256, 256, LDS)
```

```python
S, D, H, DH, F = 2048, 640, 32, 20, 1728
WS_PHIQ = 0
WS_KVP  = 0x0600000
KVP_STRIDE = 7168
WS_O    = 0x0800000
WS_H    = 0x0B00000
WS_ST   = 0x0E00000
WS_CS   = 0x0E80000
WS_HH   = 0x1000000
WS_DBG  = 0x2000000
A_X, A_WQKV, A_WPHI, A_WO, B_X, B_WG, B_WU, B_WD, OUT, DBG, WS = [8*i for i in range(11)]
```

```python
import sys; sys.path.insert(0,'gen')
from gemm import *
from k1 import *
stamps = len(sys.argv) > 2 and sys.argv[2] == 'stamps'
hdr = [l.rstrip('\n') for l in open('sequential_preLN__linear_kernel_hedgehog__glu_gated_geglu__prompt.s.ref') if l.startswith(';') and '@launch' not in l and 'Override' not in l and 'grid=ceil' not in l]
ks = [k1a_kernel('k1a_kernel', stamps), k1b_kernel('k1b_kernel', stamps), gemm_kernel('k2_kernel','k2', stamps), gemm_kernel('k3_kernel','k3', stamps), gemm_kernel('k4_kernel','k4', stamps)]
open(sys.argv[1],'w').write(build_file(hdr, [k for k,_ in ks], [l for _,l in ks]))
for k,l in ks: print(l, 'vmax', k.vmax, 'smax', k.smax, 'ninst', len(k.ins))
```

```python
import sys; sys.path.insert(0,'gen')
from gemm import *
from k1 import *
hdr = [l.rstrip('\n') for l in open('sequential_preLN__linear_kernel_hedgehog__glu_gated_geglu__prompt.s.ref') if l.startswith(';') and '@launch' not in l and 'Override' not in l and 'grid=ceil' not in l]
def base(): return [k1a_kernel('k1a_kernel'), k1b_kernel('k1b_kernel'), gemm_kernel('k2_kernel','k2'), gemm_kernel('k3_kernel','k3'), gemm_kernel('k4_kernel','k4')]
for n in (1, 4):
    ks = base()
    e = Kernel('empty_kernel'); e('s_endpgm')
    open(f'var_e{n}.s','w').write(build_file(hdr, [k for k,_ in ks] + [e], [l for _,l in ks] + [('empty_kernel', 256, 512, 0)] * n))
ks = base()
open('var_x2.s','w').write(build_file(hdr, [k for k,_ in ks], [l for _,l in ks] * 2))
```

```python
from asmlib import *
from layout import *
import math, struct
f2u = lambda f: struct.unpack('<I', struct.pack('<f', f))[0]
OOB = 0x40000000

def srd(k, d, lo, hi, nbytes):
    k(f's_mov_b32 s{d}, {lo}\ns_mov_b32 s{d+1}, {hi}\ns_mov_b32 s{d+2}, {nbytes}\ns_mov_b32 s{d+3}, 0x20000')

def srd_ws(k, d, wslo, off, nbytes):
    k(f's_add_u32 s{d}, s{wslo}, {off}\ns_addc_u32 s{d+1}, s{wslo+1}, 0\ns_mov_b32 s{d+2}, {nbytes}\ns_mov_b32 s{d+3}, 0x20000')

def magic(c, maxv):
    for sh in range(4, 24):
        m = -(-(1 << sh) // c)
        if all((v * m) >> sh == v // c for v in range(maxv + 1)) and m * maxv < (1 << 31) and m < (1 << 24):
            return m, sh
    raise ValueError

def sdiv(k, dst, src, c, maxv):
    m, sh = magic(c, maxv)
    k(f's_mul_i32 s{dst}, s{src}, {m}\ns_lshr_b32 s{dst}, s{dst}, {sh}')

def vdiv(k, dst, src, c, maxv):
    m, sh = magic(c, maxv)
    k(f'v_mul_u32_u24 v{dst}, {m}, v{src}\nv_lshrrev_b32 v{dst}, {sh}, v{dst}')

def red_g(k, v, t):
    k(f'v_mov_b32 v{t}, v{v}\nv_permlane32_swap_b32 v{v}, v{t}\nv_add_f32 v{v}, v{v}, v{t}')
    k(f'v_mov_b32 v{t}, v{v}\nv_permlane16_swap_b32 v{v}, v{t}\nv_add_f32 v{v}, v{v}, v{t}')

def interleave(rd, mf, frac=0.75):
    out = []; nr = len(rd); nm = len(mf)
    per = max(1, -(-nr // max(1, int(nm * frac))))
    ri = 0
    for m in mf:
        out += rd[ri:ri + per]; ri += per
        out.append(m)
    return out + rd[ri:]

class Stamps:
    def __init__(self, k, on, slot): self.k = k; self.on = on; self.n = 0; self.slot = slot
    def __call__(self):
        if self.on:
            self.k(f's_memtime s[{80 + 2*self.n}:{81 + 2*self.n}]'); self.n += 1
    def dump(self, role, wave_sgpr):
        if not self.on: return
        k = self.k
        k('s_waitcnt lgkmcnt(0) vmcnt(0)')
        k(f's_memtime s[{80 + 2*self.n}:{81 + 2*self.n}]\ns_waitcnt lgkmcnt(0)'); n = self.n + 1
        srd_ws(k, 76, 4, WS_DBG + self.slot * 0x100000, 0x100000)
        k(f's_lshl_b32 s3, s2, 3\ns_add_u32 s3, s3, s{wave_sgpr}\ns_add_u32 s3, s3, {role}\ns_lshl_b32 s3, s3, 7')
        k('v_mov_b32 v1, 0')
        for i in range(n):
            k(f'v_mov_b32 v2, s{80 + 2*i}\nbuffer_store_dword v2, v1, s[76:79], s3 offen offset:{4*i}')
        k('s_waitcnt vmcnt(0)')

ALL4 = 0x01010101
class Ring:
    def __init__(self, k, FL, vA, vB, vOne, vF, sT):
        self.k = k; self.FL = FL; self.vA = vA; self.vB = vB; self.vOne = vOne; self.vF = vF; self.sT = sT; self.slow = []
    def setup(self, wave_sgpr, zero):
        k = self.k
        k(f'v_mov_b32 v{self.vB}, {self.FL}\nv_add_u32 v{self.vA}, s{wave_sgpr}, v{self.vB}\nv_mov_b32 v{self.vOne}, 1')
        if zero:
            k(f'v_lshl_add_u32 v{self.vF}, v0, 2, v{self.vB}\nv_mov_b32 v{self.vOne}, 0\nds_write_b32 v{self.vF}, v{self.vOne}\ns_waitcnt lgkmcnt(0)\nv_mov_b32 v{self.vOne}, 1')
    def rd(self, off): return f'ds_read_b32 v{self.vF}, v{self.vB} offset:{off}'
    def rd_full(self, j): return self.rd(4 * j)
    def rd_free(self, j): return self.rd(128 + 4 * j)
    def set_full(self, j): return f'ds_write_b8 v{self.vA}, v{self.vOne} offset:{4 * j}'
    def set_free(self, j): return f'ds_write_b8 v{self.vA}, v{self.vOne} offset:{128 + 4 * j}'
    def check(self, off, sleep=1):
        k = self.k
        Ls = k.label('slow'); Lb = k.label('back')
        k(f'v_readfirstlane_b32 s{self.sT}, v{self.vF}\ns_cmp_eq_u32 s{self.sT}, {ALL4}\ns_cbranch_scc0 {Ls}\n{Lb}:')
        self.slow.append((Ls, Lb, off, sleep))
    def check_full(self, j): self.check(4 * j)
    def check_free(self, j): self.check(128 + 4 * j)
    def emit_slow(self):
        k = self.k
        for Ls, Lb, off, sleep in self.slow:
            k(f'{Ls}:\n{self.rd(off)}\ns_waitcnt lgkmcnt(0)\nv_readfirstlane_b32 s{self.sT}, v{self.vF}\ns_cmp_eq_u32 s{self.sT}, {ALL4}\ns_cbranch_scc1 {Lb}\ns_sleep {sleep}\ns_branch {Ls}')
        self.slow = []
```

```python
from common import *

def gemm_kernel(name, kind, stamps=False, opt=None):
    opt = opt or {}
    k = Kernel(name)
    if kind in ('k2', 'k4'):
        NWG, RB, XB, NL, TT, SL = 250, 82, 12, 1, 3, 7
        NST = 10 if kind == 'k2' else 27
        XP = 1280 if kind == 'k2' else 3456
        WP = 1280
        U = 2
    else:
        NWG, RB, XB, NL, TT, SL = 216, 256, 32, 2, 8, 3
        NST, XP, WP = 10, 1280, 3456
        U = 1
    SLOT = XB * 1024 + NL * 8192
    MISC = SL * SLOT
    FL = MISC + (12288 if kind != 'k3' else 4096 + 512)
    LDS = FL
    FL = 0
    nX = XB // 4
    nD = nX + 2 * NL
    N0 = opt.get('n0', 3 * nD if kind != 'k3' else nD + 6)
    NPER = opt.get('nper', 2 * nD if kind != 'k3' else nD + 4)
    HALF = 5 if NST == 10 else 14
    rot = opt.get('rot', 0)

    Lend = k.label('end'); Lcomp = k.label('comp')
    k(f's_cmp_ge_u32 s2, {NWG}\ns_cbranch_scc1 {Lend}')
    st = Stamps(k, stamps, {'k2': 0, 'k3': 1, 'k4': 2}[kind]); st()
    k(f's_load_dwordx2 s[4:5], s[0:1], {WS}')
    if kind == 'k2':
        k(f's_load_dwordx2 s[6:7], s[0:1], {A_WO}\ns_load_dwordx2 s[8:9], s[0:1], {A_X}')
    elif kind == 'k3':
        k(f's_load_dwordx4 s[8:11], s[0:1], {B_WG}\ns_load_dwordx2 s[12:13], s[0:1], {B_WD}')
    else:
        k(f's_load_dwordx4 s[8:11], s[0:1], {B_WD}')
    k('s_and_b32 s20, s2, 7\ns_lshr_b32 s21, s2, 3')
    k('v_lshrrev_b32 v1, 6, v0\nv_and_b32 v0, 63, v0')
    if kind != 'k3':
        k('s_mul_i32 s22, s20, 31\ns_min_u32 s23, s20, 2\ns_add_u32 s22, s22, s23\ns_add_u32 s22, s22, s21')
        k('s_cmp_ge_u32 s22, 125\ns_cselect_b32 s23, 1, 0\ns_mul_i32 s24, s23, 125\ns_sub_u32 s22, s22, s24')
        sdiv(k, 30, 22, 5, 124)
        k('s_mul_i32 s24, s30, 5\ns_sub_u32 s24, s22, s24')
        k('s_mul_i32 s31, s23, 5\ns_add_u32 s31, s31, s24')
    else:
        k('s_lshr_b32 s23, s20, 2\ns_mul_i32 s22, s23, 27\ns_add_u32 s22, s22, s21')
        k('s_lshr_b32 s31, s22, 1\ns_and_b32 s24, s22, 1\ns_and_b32 s25, s20, 3\ns_lshl_b32 s30, s25, 1\ns_add_u32 s30, s30, s24')
    k('v_readfirstlane_b32 s35, v1')
    k(f's_mul_i32 s32, s23, {HALF}')
    k(f's_mul_i32 s33, s30, {RB}')
    k('s_lshl_b32 s34, s31, 7')
    if opt.get('samex'): k('s_mov_b32 s33, 0')
    if opt.get('samew'): k('s_and_b32 s34, s34, 128')
    k(f's_cmp_lt_u32 s35, 4\ns_cbranch_scc1 {Lcomp}')

    k('s_sub_u32 s35, s35, 4')
    if opt.get('lprio', 0): k(f's_setprio {opt["lprio"]}')
    k('v_lshrrev_b32 v1, 3, v0\nv_and_b32 v2, 7, v0\nv_lshrrev_b32 v3, 4, v0')
    k('v_lshrrev_b32 v22, 5, v0\nv_lshlrev_b32 v22, 3, v22\nv_and_b32 v23, 3, v1\nv_add_u32 v22, v22, v23')
    k('s_lshr_b32 s36, s35, 1\ns_lshl_b32 s36, s36, 5\ns_and_b32 s37, s35, 1\ns_lshl_b32 s37, s37, 2\ns_add_u32 s36, s36, s37\nv_add_u32 v22, s36, v22')
    k(f'v_mul_u32_u24 v22, {WP}, v22')
    k('v_lshlrev_b32 v23, 1, v3\nv_xor_b32 v23, v2, v23\nv_lshl_add_u32 v12, v23, 4, v22\nv_add_u32 v12, s34, v12')
    k(f'v_add_u32 v13, {16 * WP}, v12')
    k('v_add_u32 v3, s37, v3\nv_xor_b32 v3, v2, v3\nv_lshlrev_b32 v3, 4, v3')
    k('s_lshl_b32 s36, s35, 3\nv_add_u32 v20, s36, v1')
    k(f'v_add_u32 v23, s33, v20\nv_mul_u32_u24 v24, {XP}, v23\nv_add_u32 v4, v24, v3\nv_mov_b32 v21, {OOB}')
    for i in range(1, nX):
        k(f'v_add_u32 v{4 + i}, {32 * i * XP}, v4')
    if RB % 32:
        k(f'v_cmp_gt_u32 vcc, {RB - 32 * (nX - 1)}, v20\nv_cndmask_b32 v{4 + nX - 1}, v21, v{4 + nX - 1}, vcc\ns_or_b64 s[62:63], vcc, 1')
    k(f's_lshl_b32 s64, s35, 10\ns_lshl_b32 s65, s35, 11\ns_mov_b32 s66, s32')
    if rot == 1:
        k(f's_mul_i32 s66, s21, {opt.get("rotm", 3)}')
        sdiv(k, 67, 66, NST, 32 * opt.get('rotm', 3))
        k(f's_mul_i32 s67, s67, {NST}\ns_sub_u32 s66, s66, s67')
    k('s_waitcnt lgkmcnt(0)')
    if kind == 'k2':
        srd(k, 44, 's6', 's7', D * 1280); srd_ws(k, 40, 4, WS_O, S * 1280); srd(k, 48, 's8', 's9', S * 1280)
    elif kind == 'k3':
        srd(k, 44, 's8', 's9', D * 3456); srd(k, 48, 's10', 's11', D * 3456); srd_ws(k, 40, 4, WS_H, S * 1280)
    else:
        srd(k, 44, 's8', 's9', F * 1280); srd_ws(k, 40, 4, WS_HH, S * 3456); srd_ws(k, 48, 4, WS_H, S * 1280)
    st()
    vm = []
    def instrs(s):
        base = (s % SL) * SLOT; out = []
        pre = f's_lshl_b32 s67, s66, 7\ns_mul_i32 s68, s66, {64 * WP}\ns_add_u32 s66, s66, 1\ns_cmp_eq_u32 s66, {NST}\ns_cselect_b32 s66, 0, s66\n'
        for ln in range(NL):
            for g1 in range(2):
                out.append(f's_add_u32 m0, s65, {base + XB * 1024 + ln * 8192 + g1 * 1024}\nbuffer_load_dwordx4 v{12 + g1}, s[{44 + 4*ln}:{47 + 4*ln}], s68 offen lds')
        for i in range(nX):
            t = f'buffer_load_dwordx4 v{4 + i}, s[40:43], s67 offen lds'
            if RB % 32 and i == nX - 1: t = f's_mov_b64 exec, s[62:63]\n{t}\ns_mov_b64 exec, -1'
            out.append(f's_add_u32 m0, s64, {base + i * 4096}\n{t}')
        out[0] = pre + out[0]
        return [(s, t) for t in out]
    queue = []
    for s in range(NST): queue += instrs(s)
    if kind in ('k2', 'k4'):
        pre = f'v_mul_u32_u24 v24, 1280, v23\nv_add3_u32 v14, v24, v3, s34\nv_add_u32 v15, {32 * 1280}, v14\nv_add_u32 v16, {64 * 1280}, v14\nv_cmp_gt_u32 vcc, {RB - 64}, v20\nv_cndmask_b32 v16, v21, v16, vcc\n'
        ex = [('x', (pre if i == 0 else '') + f's_add_u32 m0, s64, {MISC + i * 4096}\nbuffer_load_dwordx4 v{14 + i}, s[48:51], 0 offen lds') for i in range(3)]
        pos = (NST - 2) * nD
        queue = queue[:pos] + ex + queue[pos:]
    qi = [0]
    def issue_upto(maxstage, maxn):
        n = 0
        while qi[0] < len(queue) and n < maxn:
            tag, t = queue[qi[0]]
            if tag != 'x' and tag > maxstage: break
            k(t); vm.append(tag); qi[0] += 1; n += 1
            if qi[0] == len(queue): st()
    def wait_for(tag):
        idx = max(i for i, t in enumerate(vm) if t == tag)
        assert sum(1 for t in vm if t == tag) == nD, (tag, vm)
        k(f's_waitcnt vmcnt({min(63, len(vm) - 1 - idx)})')
    issue_upto(SL - 1, N0)
    wait_for(0)
    st()
    k('s_barrier')
    for s in range(NST):
        issue_upto(s + SL - 1, NPER)
        if s < NST - 1:
            while sum(1 for t in vm if t == s + 1) < nD: issue_upto(s + 1, 1)
            wait_for(s + 1)
            k('s_barrier')
    if kind == 'k3' and opt.get('touch_wd', False):
        srd(k, 52, 's12', 's13', F * 1280)
        k('s_mul_i32 s38, s21, 320\ns_mul_i32 s39, s35, 80\ns_add_u32 s38, s38, s39\ns_mul_i32 s39, s23, 640')
        for i in range(2):
            k(f'v_add_u32 v14, {64 * i}, v0\nv_cmp_gt_u32 vcc, 80, v14\nv_add_u32 v14, s38, v14')
            vdiv(k, 15, 14, 5, 8640 + 256)
            k(f'v_mul_u32_u24 v16, 5, v15\nv_sub_u32 v16, v14, v16\nv_mul_u32_u24 v15, 1280, v15\nv_lshl_add_u32 v15, v16, 7, v15\nv_cndmask_b32 v15, v21, v15, vcc')
            k(f'buffer_load_dword v{34 + i}, v15, s[52:55], s39 offen')
    if kind == 'k2': k('s_barrier')
    st.dump(4, 35)
    k(f'{Lend}:\ns_endpgm')

    k(f'{Lcomp}:')
    st.n = 1
    if opt.get('prio', 0): k(f's_setprio {opt["prio"]}')
    k(f's_mov_b32 s75, {S}')
    k('s_lshr_b32 s36, s35, 1\ns_and_b32 s37, s35, 1')
    k('v_and_b32 v2, 15, v0\nv_lshrrev_b32 v3, 4, v0')
    k(f's_mul_i32 s38, s36, {TT * 2048}')
    k('v_lshrrev_b32 v6, 1, v2')
    k('v_xor_b32 v7, v3, v6\nv_lshlrev_b32 v7, 4, v7\nv_lshl_add_u32 v4, v2, 7, v7\nv_add_u32 v4, s38, v4')
    k('v_xor_b32 v5, 64, v4')
    k('v_bfe_u32 v8, v0, 2, 3\nv_bfe_u32 v9, v0, 3, 2\nv_lshrrev_b32 v10, 5, v0')
    k('s_lshl_b32 s39, s37, 1')
    k('v_xor_b32 v9, s39, v9')
    k('v_and_b32 v11, 3, v0\nv_lshlrev_b32 v11, 3, v11')
    k('v_lshl_add_u32 v11, v8, 7, v11\nv_lshl_add_u32 v11, v10, 10, v11')
    k(f'v_add_u32 v11, {XB * 1024}, v11')
    k('v_lshl_add_u32 v6, v9, 5, v11\nv_xor_b32 v7, 32, v6')
    NW = 2 * NL
    per_ks = TT + NW
    spg = 3 if kind != 'k3' else 1
    ngrp = -(-SL // spg)
    AB = 16
    for gi in range(ngrp):
        for a in range(4):
            k(f'v_add_u32 v{AB + 4*gi + a}, {gi * spg * SLOT}, v{4 + a}')
    FB = AB + 4 * ngrp
    setsz = U * per_ks * 4
    ACC = FB + 2 * setsz
    def xf(st_, u, tt): return FB + st_ * setsz + (u * per_ks + tt) * 4
    def wf(st_, u, j): return FB + st_ * setsz + (u * per_ks + TT + j) * 4
    def acc(tt, j): return ACC + (tt * NW + j) * 4
    def reads(st_, kss, stage):
        out = []
        if opt.get('noread'): return out
        slot = stage % SL; ab = AB + 4 * (slot // spg); so = (slot % spg) * SLOT
        for u, ks in enumerate(kss):
            for j in range(NW):
                ln, jj = j // 2, j % 2
                b = wf(st_, u, j)
                for i in range(2):
                    out.append(f'ds_read_b64_tr_b16 v[{b + 2*i}:{b + 2*i + 1}], v{ab + 2 + jj} offset:{so + ln * 8192 + ks * 4096 + i * 2048}')
            for tt in range(TT):
                b = xf(st_, u, tt)
                out.append(f'ds_read_b128 v[{b}:{b+3}], v{ab + ks} offset:{so + tt * 2048}')
        return out
    def mfmas(st_, zero=False):
        out = []
        if opt.get('nomfma'): return ['s_nop 0'] * 4
        if opt.get('fake32'):
            for h in range(2):
                for tt in range(TT):
                    a = acc(tt, 0); w = wf(st_, 0, (tt + h) % 4); x = xf(st_, 0, tt)
                    out.append(f'v_mfma_f32_32x32x16_bf16 v[{a}:{a+15}], v[{w}:{w+3}], v[{x}:{x+3}], v[{a}:{a+15}]')
            return out
        for u in range(U):
            for tt in range(TT):
                for j in range(NW):
                    a = acc(tt, j); w = wf(st_, u, j); x = xf(st_, u, tt)
                    c = '0' if (zero and u == 0) else f'v[{a}:{a+3}]'
                    out.append(f'v_mfma_f32_16x16x32_bf16 v[{a}:{a+3}], v[{w}:{w+3}], v[{x}:{x+3}], {c}')
        return out
    OP = 3456 if kind == 'k3' else 1280
    k('v_and_b32 v8, 1, v3\nv_lshlrev_b32 v8, 5, v8\nv_lshrrev_b32 v9, 1, v3\nv_lshl_add_u32 v8, v9, 4, v8')
    k(f's_lshl_b32 s39, s37, 6\ns_add_u32 s39, s39, s34\nv_add_u32 v8, s39, v8')
    k(f's_mul_i32 s38, s36, {TT * 16}\nv_add_u32 v9, s38, v2')
    k(f'v_add_u32 v10, s33, v9\nv_mul_u32_u24 v10, {OP}, v10\nv_add_u32 v10, v10, v8')
    k('s_waitcnt lgkmcnt(0)')
    if kind == 'k2':
        srd_ws(k, 52, 4, WS_H, S * 1280); srd_ws(k, 56, 4, WS_ST, 10 * S * 8)
    elif kind == 'k3':
        srd_ws(k, 52, 4, WS_HH, S * 3456)
    else:
        srd(k, 52, 's10', 's11', S * 1280)
    if kind in ('k2', 'k4'):
        k('v_lshrrev_b32 v11, 1, v2')
        k('v_lshrrev_b32 v8, 1, v3\ns_lshl_b32 s39, s37, 2\nv_add_u32 v8, s39, v8\nv_xor_b32 v8, v8, v11\nv_lshlrev_b32 v8, 4, v8')
        k('v_and_b32 v11, 1, v3\nv_lshl_add_u32 v8, v11, 3, v8\nv_lshl_add_u32 v8, v9, 7, v8')
        k(f'v_add_u32 v8, {MISC}, v8\nv_xor_b32 v11, 32, v8')
        k(f'v_mov_b32 v7, {OOB}\nv_mov_b32 v4, v10\nv_add_u32 v5, {16 * OP}, v10\nv_add_u32 v6, {32 * OP}, v10\nv_cmp_gt_u32 vcc, {RB - 32}, v9\nv_cndmask_b32 v6, v7, v6, vcc')
    else:
        k(f'v_lshlrev_b32 v8, 4, v3\ns_lshl_b32 s39, s37, 7\nv_add_u32 v8, s39, v8\nv_add_u32 v8, {MISC + 4096}, v8')
        k(f'v_lshlrev_b32 v11, 4, v9\nv_add_u32 v11, {MISC}, v11')
    if kind == 'k3':
        V = ACC
        srd_ws(k, 56, 4, WS_ST, 10 * S * 8); srd_ws(k, 60, 4, WS_CS, 8 * 3456 * 4)
        k('s_lshl_b32 s72, s35, 6\ns_add_u32 s72, s72, s33\nv_add_u32 v12, s72, v0\nv_lshlrev_b32 v12, 3, v12')
        for p in range(10):
            k(f's_mov_b32 s73, {p * 16384}\nbuffer_load_dwordx2 v[{V + 2*p}:{V + 2*p + 1}], v12, s[56:59], s73 offen')
        k('v_and_b32 v13, 31, v0\ns_and_b32 s72, s35, 1\ns_lshl_b32 s72, s72, 5\ns_lshr_b32 s73, s35, 1\ns_mul_i32 s73, s73, 1728\ns_add_u32 s72, s72, s73\ns_lshl_b32 s73, s31, 6\ns_add_u32 s72, s72, s73')
        k(f'v_add_u32 v13, s72, v13\nv_lshlrev_b32 v13, 2, v13\nv_lshrrev_b32 v14, 5, v0\nv_mul_u32_u24 v14, {4 * 3456 * 4}, v14\nv_add_u32 v13, v13, v14')
        for p in range(4):
            k(f's_mov_b32 s73, {p * 3456 * 4}\nbuffer_load_dword v{V + 24 + p}, v13, s[60:63], s73 offen')
        k('s_waitcnt vmcnt(4)')
        for p in range(1, 10):
            k(f'v_pk_add_f32 v[{V}:{V+1}], v[{V}:{V+1}], v[{V + 2*p}:{V + 2*p + 1}]')
        c1 = -2.0 * math.sqrt(2.0 / math.pi) * math.log2(math.e); c2 = c1 * 0.044715
        k(f'v_mul_f32 v{V}, {f2u(-1.0/640)}, v{V}\nv_mul_f32 v{V+1}, {f2u(1.0/640)}, v{V+1}')
        k(f'v_fma_f32 v{V+1}, -v{V}, v{V}, v{V+1}\nv_max_f32 v{V+1}, 0, v{V+1}')
        k(f'v_add_f32 v{V+3}, {f2u(1e-5)}, v{V+1}\nv_rsq_f32 v{V+4}, v{V+3}')
        k(f'v_mul_f32 v{V+1}, {f2u(c1)}, v{V+4}\nv_mul_f32 v{V+2}, v{V+4}, v{V+4}\nv_mul_f32 v{V+2}, v{V+2}, v{V+4}\nv_mul_f32 v{V+2}, {f2u(c2)}, v{V+2}')
        k(f's_lshl_b32 s72, s35, 10\nv_lshlrev_b32 v12, 4, v0\nv_add_u32 v12, s72, v12\nv_add_u32 v12, {MISC}, v12')
        k(f'ds_write_b128 v12, v[{V}:{V+3}]\ns_waitcnt vmcnt(0)')
        for p in range(1, 4): k(f'v_add_f32 v{V+24}, v{V+24}, v{V + 24 + p}')
        k(f'v_mov_b32 v{V+25}, v{V+24}\nv_permlane32_swap_b32 v{V+24}, v{V+25}\nv_add_f32 v{V+24}, v{V+24}, v{V+25}')
        k(f'v_and_b32 v13, 31, v0\nv_lshlrev_b32 v13, 2, v13\ns_lshl_b32 s72, s35, 7\nv_add_u32 v13, s72, v13\nv_add_u32 v13, {MISC + 4096}, v13')
        k(f'ds_write_b32 v13, v{V+24}\ns_waitcnt lgkmcnt(0)')
    st()
    k('s_barrier')
    st()
    def late(lst, item, pos):
        i = int(len(lst) * pos); return lst[:i] + [item] + lst[i:]
    for s in range(NST):
        bar = 's_waitcnt lgkmcnt(0)' + ('\ns_barrier' if s < NST - 1 else '')
        if U == 1:
            if s == 0:
                for r in reads(0, [0], s): k(r)
            else:
                for x in interleave(reads(0, [0], s), mfmas(1), opt.get('f1', 0.6)): k(x)
            k('s_waitcnt lgkmcnt(0)')
            seq = interleave(reads(1, [1], s), mfmas(0, s == 0), opt.get('f2', 0.55))
            for x in late(seq, bar, opt.get('bpos', 0.85)): k(x)
        else:
            rd = reads(s % 2, [0, 1], s)
            if s == 0:
                for r in rd: k(r)
            else:
                for x in interleave(rd, mfmas(1 - s % 2, s == 1), opt.get('f3', 0.9)): k(x)
            k(bar)
    lastset = 1 if U == 1 else (NST - 1) % 2
    last = mfmas(lastset)
    T = FB + (1 - lastset) * setsz
    if kind in ('k2', 'k4'):
        R = T; P = T + 12; Q = T + 24
        rd = []
        for tt in range(TT):
            rd.append(f'ds_read_b64 v[{R + 4*tt}:{R + 4*tt + 1}], v8 offset:{tt * 2048}')
            rd.append(f'ds_read_b64 v[{R + 4*tt + 2}:{R + 4*tt + 3}], v11 offset:{tt * 2048}')
        for x in interleave(rd, last, 0.5): k(x)
        st()
        k('s_waitcnt lgkmcnt(0)')
        if kind == 'k2':
            k(f'v_mov_b32 v{Q+8}, 0x3f803f80')
            k(f's_lshl_b32 s38, s31, 14\ns_lshl_b32 s39, s33, 3\ns_add_u32 s38, s38, s39')
        for tt in range(TT):
            for j in range(2):
                a = acc(tt, j)
                for h in range(2):
                    r = R + 4*tt + 2*j + h; q = Q + 2 * h
                    k(f'v_lshlrev_b32 v{q}, 16, v{r}\nv_and_b32 v{q+1}, 0xffff0000, v{r}')
                    k(f'v_pk_add_f32 v[{q}:{q+1}], v[{q}:{q+1}], v[{a + 2*h}:{a + 2*h + 1}]')
                    k(f'v_cvt_pk_bf16_f32 v{P + 4*tt + 2*j + h}, v{q}, v{q+1}')
            if kind == 'k2':
                sm, sq = ACC + 2*tt, ACC + 2*tt + 1
                k(f'v_mov_b32 v{sm}, 0\nv_mov_b32 v{sq}, 0')
                for i in range(4):
                    k(f'v_dot2c_f32_bf16 v{sm}, v{P + 4*tt + i}, v{Q+8}\nv_dot2c_f32_bf16 v{sq}, v{P + 4*tt + i}, v{P + 4*tt + i}')
            k(f'v_permlane16_swap_b32 v{P + 4*tt}, v{P + 4*tt + 2}\nv_permlane16_swap_b32 v{P + 4*tt + 1}, v{P + 4*tt + 3}')
            k(f'buffer_store_dwordx4 v[{P + 4*tt}:{P + 4*tt + 3}], v{4 + tt}, s[52:55], 0 offen')
        if kind == 'k2':
            for tt in range(TT):
                sm, sq = ACC + 2*tt, ACC + 2*tt + 1
                k(f'v_permlane32_swap_b32 v{sm}, v{sq}\nv_add_f32 v{sm}, v{sm}, v{sq}')
            k(f'v_permlane16_swap_b32 v{ACC}, v{ACC+2}\nv_add_f32 v{ACC}, v{ACC}, v{ACC+2}')
            k(f'v_mov_b32 v{ACC+5}, v{ACC+4}\nv_permlane16_swap_b32 v{ACC+4}, v{ACC+5}\nv_add_f32 v{ACC+4}, v{ACC+4}, v{ACC+5}')
            k(f'v_mov_b32 v{ACC+1}, v{ACC+4}\ns_lshl_b32 s39, s35, 9\nv_lshlrev_b32 v{Q}, 3, v0\nv_add_u32 v{Q+1}, s39, v{Q}\nds_write_b64 v{Q+1}, v[{ACC}:{ACC+1}] offset:{FL}')
            k(f's_xor_b32 s39, s39, 512\ns_lshl_b32 s72, s37, 2\ns_add_u32 s39, s39, s72\nv_add_u32 v{Q+1}, s39, v{Q}')
            k(f's_cmp_eq_u32 s37, 0\ns_cselect_b64 vcc, -1, 0\nv_cndmask_b32 v{ACC}, v{ACC+1}, v{ACC}, vcc')
            k(f'v_and_b32 v{Q}, 1, v3\nv_lshlrev_b32 v{Q}, 4, v{Q}\nv_cndmask_b32 v{Q}, 32, v{Q}, vcc\nv_add_u32 v{Q}, v{Q}, v9')
            k(f'v_lshrrev_b32 v{Q+2}, 1, v3\nv_lshlrev_b32 v{Q+2}, 2, v{Q+2}\nv_lshl_add_u32 v{Q+3}, v{Q}, 3, v{Q+2}')
            k(f'v_cmp_gt_u32 vcc, {RB}, v{Q}\nv_add_u32 v{Q}, s33, v{Q}\nv_cmp_gt_u32 s[68:69], s75, v{Q}\ns_and_b64 vcc, vcc, s[68:69]')
            k(f'v_cndmask_b32 v{Q+3}, v7, v{Q+3}, vcc')
            k(f's_waitcnt lgkmcnt(0)\ns_barrier\nds_read_b32 v{Q+4}, v{Q+1} offset:{FL}\ns_waitcnt lgkmcnt(0)\nv_add_f32 v{ACC}, v{ACC}, v{Q+4}')
            k(f'buffer_store_dword v{ACC}, v{Q+3}, s[56:59], s38 offen')
    else:
        CS = T; STt = T + 16
        rd = []
        for j in range(4):
            ln, jj = j // 2, j % 2
            rd.append(f'ds_read_b128 v[{CS + 4*j}:{CS + 4*j + 3}], v8 offset:{ln * 256 + jj * 64}')
        for tt in range(TT):
            rd.append(f'ds_read_b128 v[{STt + 4*tt}:{STt + 4*tt + 3}], v11 offset:{tt * 256}')
        for x in interleave(rd, last, 0.75): k(x)
        st()
        k('s_waitcnt lgkmcnt(0)')
        Q = FB + 48
        for tt in range(TT):
            s0 = STt + 4*tt
            NM = f'v[{s0}:{s0+1}]'; BI = f'v[{s0+2}:{s0+3}]'
            P = Q + 32 + 4 * (tt % 2)
            prs = [(jj, h) for jj in range(2) for h in range(2)]
            def G(i): jj, h = prs[i]; b = acc(tt, jj) + 2*h; return f'v[{b}:{b+1}]'
            def Uu(i): jj, h = prs[i]; b = acc(tt, 2 + jj) + 2*h; return f'v[{b}:{b+1}]'
            def CG(i): jj, h = prs[i]; b = CS + 4*jj + 2*h; return f'v[{b}:{b+1}]'
            def CU(i): jj, h = prs[i]; b = CS + 8 + 4*jj + 2*h; return f'v[{b}:{b+1}]'
            def Z(i): b = Q + 2*i; return f'v[{b}:{b+1}]'
            for i in range(4): k(f'v_pk_fma_f32 {G(i)}, {CG(i)}, {NM}, {G(i)} op_sel_hi:[1,0,1]')
            for i in range(4): k(f'v_pk_mul_f32 {Z(i)}, {G(i)}, {G(i)}')
            for i in range(4): k(f'v_pk_fma_f32 {Z(i)}, {Z(i)}, {BI}, {NM} op_sel:[0,0,1] op_sel_hi:[1,0,1]')
            for i in range(4): k(f'v_pk_mul_f32 {Z(i)}, {Z(i)}, {G(i)}')
            for i in range(8): k(f'v_exp_f32 v{Q+i}, v{Q+i}')
            for i in range(4): k(f'v_pk_fma_f32 {Uu(i)}, {CU(i)}, {NM}, {Uu(i)} op_sel_hi:[1,0,1]')
            for i in range(4): k(f'v_pk_fma_f32 {Z(i)}, {Z(i)}, {BI}, {BI} op_sel:[0,1,1] op_sel_hi:[1,1,1]')
            for i in range(8): k(f'v_rcp_f32 v{Q+i}, v{Q+i}')
            for i in range(4): k(f'v_pk_mul_f32 {G(i)}, {G(i)}, {Uu(i)}')
            for i in range(4): k(f'v_pk_mul_f32 {G(i)}, {G(i)}, {Z(i)}')
            for i in range(4):
                jj, h = prs[i]; b = acc(tt, jj) + 2*h
                k(f'v_cvt_pk_bf16_f32 v{P + i}, v{b}, v{b+1}')
            k(f'v_permlane16_swap_b32 v{P}, v{P+2}\nv_permlane16_swap_b32 v{P+1}, v{P+3}')
            k(f's_mov_b32 s38, {tt * 16 * OP}')
            k(f'buffer_store_dwordx4 v[{P}:{P+3}], v10, s[52:55], s38 offen')
    st()
    st.dump(0, 35)
    k('s_endpgm')
    k.fix_hazards_fast()
    errs = k.check_waits()
    if errs: print(name, 'WAIT ERRS', errs[:10])
    return k, (name, NWG, 512, LDS)
```

```python
from asmlib import *
from layout import *
from common import *
import math, struct
f2u = lambda f: struct.unpack('<I', struct.pack('<f', f))[0]
LOG2E = math.log2(math.e)

SLOT = 20480; NSL = 7
XB = 3 * SLOT
MISC_W = NSL * SLOT
MISC_Z = MISC_W + 3200
PHI = 1 * SLOT
VV = 2 * SLOT
LDS1 = MISC_W + 4096

def tile_map(k):
    k('s_and_b32 s20, s2, 7\ns_lshr_b32 s21, s2, 3')
    k('s_and_b32 s22, s20, 3\ns_lshl_b32 s22, s22, 3\ns_and_b32 s23, s21, 7\ns_add_u32 s30, s22, s23')
    k('s_lshr_b32 s22, s20, 2\ns_lshl_b32 s22, s22, 2\ns_lshr_b32 s24, s21, 3\ns_add_u32 s31, s22, s24')
    k('s_lshl_b32 s24, s24, 1\ns_add_u32 s32, s23, s24\ns_cmp_ge_u32 s32, 10\ns_cselect_b32 s24, 10, 0\ns_sub_u32 s32, s32, s24')

def red_g(k, v, t):
    k(f'v_mov_b32 v{t}, v{v}\nv_permlane32_swap_b32 v{v}, v{t}\nv_add_f32 v{v}, v{v}, v{t}')
    k(f'v_mov_b32 v{t}, v{v}\nv_permlane16_swap_b32 v{v}, v{t}\nv_add_f32 v{v}, v{v}, v{t}')

def feature_map(k, ACC, RSTD, QB, WPH, P, EP, EM, OUTP, T):
    for i in range(10):
        k(f'v_mul_f32 v{T}, v{RSTD}, v{ACC + 2*i}\nv_mul_f32 v{T+1}, v{RSTD}, v{ACC + 2*i + 1}\nv_cvt_pk_bf16_f32 v{QB + i}, v{T}, v{T+1}')
    k(f'v_mov_b32 v{QB + 10}, 0\nv_mov_b32 v{QB + 11}, 0')
    for s in range(3):
        for i in range(5):
            w = WPH + (i * 3 + s) * 4; p = P + 4 * i; b = QB + 4 * s
            c = '0' if s == 0 else f'v[{p}:{p+3}]'
            k(f'v_mfma_f32_16x16x32_bf16 v[{p}:{p+3}], v[{w}:{w+3}], v[{b}:{b+3}], {c}')
    mx, mn = T, T + 1
    k(f'v_max3_f32 v{mx}, v{P}, v{P+1}, v{P+2}\nv_min3_f32 v{mn}, v{P}, v{P+1}, v{P+2}')
    for i in range(3, 19, 2):
        k(f'v_max3_f32 v{mx}, v{mx}, v{P+i}, v{P+i+1}\nv_min3_f32 v{mn}, v{mn}, v{P+i}, v{P+i+1}')
    k(f'v_max_f32 v{mx}, v{mx}, v{P+19}\nv_min_f32 v{mn}, v{mn}, v{P+19}')
    k(f's_mov_b32 s70, {f2u(LOG2E)}')
    k(f'v_mul_f32 v{mx}, s70, v{mx}\nv_mul_f32 v{mn}, s70, v{mn}')
    for i in range(20):
        k(f'v_fma_f32 v{EP+i}, v{P+i}, s70, -v{mx}\nv_fma_f32 v{EM+i}, -v{P+i}, s70, v{mn}')
    for i in range(20):
        k(f'v_exp_f32 v{EP+i}, v{EP+i}\nv_exp_f32 v{EM+i}, v{EM+i}')
    sp, sm = T + 2, T + 3
    k(f'v_add_f32 v{sp}, v{EP}, v{EP+1}\nv_add_f32 v{sm}, v{EM}, v{EM+1}')
    for i in range(2, 20):
        k(f'v_add_f32 v{sp}, v{sp}, v{EP+i}\nv_add_f32 v{sm}, v{sm}, v{EM+i}')
    k(f'v_rcp_f32 v{sp}, v{sp}\nv_rcp_f32 v{sm}, v{sm}')
    for i in range(20):
        k(f'v_mul_f32 v{EP+i}, v{sp}, v{EP+i}\nv_mul_f32 v{EM+i}, v{sm}, v{EM+i}')
    for i in range(10):
        k(f'v_cvt_pk_bf16_f32 v{OUTP+i}, v{EP+2*i}, v{EP+2*i+1}\nv_cvt_pk_bf16_f32 v{OUTP+10+i}, v{EM+2*i}, v{EM+2*i+1}')

def k1a_kernel(name, stamps=False, prefetch=True, codepf=True):
    k = Kernel(name)
    Lend = k.label('end'); Lload = k.label('loader')
    k(f's_cmp_ge_u32 s2, 256\ns_cbranch_scc1 {Lend}')
    st = Stamps(k, stamps, 3); st()
    k(f's_load_dwordx2 s[4:5], s[0:1], {WS}\ns_load_dwordx4 s[8:11], s[0:1], {A_X}\ns_load_dwordx4 s[12:15], s[0:1], {A_WPHI}\ns_load_dwordx4 s[16:19], s[0:1], {B_WG}')
    tile_map(k)
    k('v_lshrrev_b32 v1, 6, v0\nv_and_b32 v0, 63, v0\nv_readfirstlane_b32 s35, v1')
    k('s_waitcnt lgkmcnt(0)')
    srd(k, 40, 's8', 's9', S * 1280)
    srd(k, 44, 's10', 's11', D * 3840)
    srd(k, 48, 's12', 's13', 32 * 800)
    srd_ws(k, 52, 4, WS_PHIQ, 32 * 8 * 4 * 5 * 1024)
    srd_ws(k, 56, 4, WS_KVP, 256 * KVP_STRIDE)
    srd_ws(k, 60, 4, WS_CS, 16 * 3456 * 4)
    k(f's_cmp_ge_u32 s35, 4\ns_cbranch_scc1 {Lload}')

    XR = 16; WB = 96; WPH = 136; AK = 196; AV = 216; AQ = 236
    k('v_and_b32 v2, 15, v0\nv_lshrrev_b32 v3, 4, v0')
    k('v_lshrrev_b32 v8, 1, v2\nv_xor_b32 v8, v3, v8\nv_lshlrev_b32 v8, 4, v8\nv_lshl_add_u32 v4, v2, 7, v8')
    k(f's_lshl_b32 s36, s35, 11\ns_add_u32 s36, s36, {XB}\nv_add_u32 v4, s36, v4\nv_xor_b32 v5, 64, v4')
    k(f'v_add_u32 v6, {5 * 8192}, v4\nv_add_u32 v7, {5 * 8192}, v5')
    k('v_lshrrev_b32 v11, 5, v0\nv_lshlrev_b32 v11, 4, v11\nv_bfe_u32 v12, v0, 4, 1\nv_lshl_add_u32 v11, v12, 2, v11\nv_bfe_u32 v12, v0, 2, 2\nv_add_u32 v11, v11, v12')
    k('v_mul_u32_u24 v11, 160, v11\nv_and_b32 v12, 3, v0\nv_mul_u32_u24 v12, 40, v12\nv_add_u32 v8, v11, v12')
    k(f'v_add_u32 v9, {3 * SLOT}, v8\nv_add_u32 v10, {6 * SLOT}, v8')
    st()
    k('s_barrier')
    st()
    for ks in range(20):
        ln, ksl = ks // 2, ks % 2
        a = (4 if ln < 5 else 6) + ksl
        k(f'ds_read_b128 v[{XR + 4*ks}:{XR + 4*ks + 3}], v{a} offset:{(ln % 5) * 8192}')
    k('s_waitcnt lgkmcnt(0)\ns_barrier')
    T = WB
    k(f'v_mov_b32 v11, 0x3f803f80')
    for i in range(4): k(f'v_mov_b32 v{T+i}, 0')
    for i in range(80): k(f'v_dot2c_f32_bf16 v{T + i % 4}, v{XR+i}, v11')
    k(f'v_add_f32 v{T}, v{T}, v{T+1}\nv_add_f32 v{T+2}, v{T+2}, v{T+3}\nv_add_f32 v{T}, v{T}, v{T+2}')
    red_g(k, T, T + 1)
    k(f'v_mul_f32 v12, {f2u(-1.0/640)}, v{T}\nv_mov_b32 v13, v12')
    for i in range(80):
        a = T + 4 + 2 * (i % 4)
        k(f'v_lshlrev_b32 v{a}, 16, v{XR+i}\nv_and_b32 v{a+1}, 0xffff0000, v{XR+i}\nv_pk_add_f32 v[{a}:{a+1}], v[{a}:{a+1}], v[12:13]\nv_cvt_pk_bf16_f32 v{XR+i}, v{a}, v{a+1}')
    for i in range(4): k(f'v_mov_b32 v{T+i}, 0')
    for i in range(80): k(f'v_dot2c_f32_bf16 v{T + i % 4}, v{XR+i}, v{XR+i}')
    k(f'v_add_f32 v{T}, v{T}, v{T+1}\nv_add_f32 v{T+2}, v{T+2}, v{T+3}\nv_add_f32 v{T}, v{T}, v{T+2}')
    red_g(k, T, T + 1)
    k(f'v_mov_b32 v13, {f2u(1e-5)}\nv_mov_b32 v12, {f2u(1.0/640)}\nv_fma_f32 v14, v{T}, v12, v13\nv_rsq_f32 v14, v14')
    RSTD = 14
    st()
    def waddr(slot):
        return (8 + slot // 3, (slot % 3) * SLOT)
    def rdA(buf, stage, ksl):
        a, off = waddr(stage % NSL); out = []
        for sg in range(2):
            for i_n in range(5):
                b = WB + buf * 40 + (sg * 5 + i_n) * 4
                for i in range(2):
                    out.append(f'ds_read_b64_tr_b16 v[{b+2*i}:{b+2*i+1}], v{a} offset:{off + (ksl*2+sg)*5120 + i*1280 + i_n*8}')
        return out
    def mfA(buf, ks):
        out = []
        for sg in range(2):
            for i_n in range(5):
                b = WB + buf * 40 + (sg * 5 + i_n) * 4; a = (AK if sg == 0 else AV) + 4 * i_n; x = XR + 4 * ks
                c = '0' if ks == 0 else f'v[{a}:{a+3}]'
                out.append(f'v_mfma_f32_16x16x32_bf16 v[{a}:{a+3}], v[{b}:{b+3}], v[{x}:{x+3}], {c}')
        return out
    def inter(rd, mf):
        out = []; per = -(-len(rd) // len(mf)); ri = 0
        for m in mf:
            out += rd[ri:ri+per]; ri += per; out.append(m)
        return out + rd[ri:]
    for s in range(10):
        if s == 0:
            for r in rdA(0, 0, 0): k(r)
        else:
            for x in inter(rdA(0, s, 0), mfA(1, 2*s - 1)): k(x)
        k('s_waitcnt lgkmcnt(0)')
        for x in inter(rdA(1, s, 1), mfA(0, 2*s)): k(x)
        k('s_waitcnt lgkmcnt(0)\ns_barrier')
    for m in mfA(1, 19): k(m)
    st()
    k('v_and_b32 v11, 3, v0\nv_cmp_eq_u32 vcc, v11, v3')
    k(f'v_mul_u32_u24 v11, 800, v3\nv_bfe_u32 v12, v0, 2, 2\nv_mul_u32_u24 v12, 40, v12\nv_add3_u32 v11, v11, v12, 0\nv_add_u32 v11, {MISC_W}, v11')
    k(f'v_mov_b32 v12, {MISC_Z}\nv_cndmask_b32 v11, v12, v11, vcc')
    for i in range(5):
        for s in range(3):
            w = WPH + (i * 3 + s) * 4
            for h in range(2):
                if s == 2 and h == 1:
                    k(f'v_mov_b32 v{w+2}, 0\nv_mov_b32 v{w+3}, 0')
                else:
                    k(f'ds_read_b64_tr_b16 v[{w+2*h}:{w+2*h+1}], v11 offset:{(8*s + 4*h) * 40 + 8*i}')
    VB = WB + 12
    for i in range(10):
        k(f'v_mul_f32 v12, v{RSTD}, v{AV + 2*i}\nv_mul_f32 v13, v{RSTD}, v{AV + 2*i + 1}\nv_cvt_pk_bf16_f32 v{VB + i}, v12, v13')
    k(f'v_mov_b32 v{VB+10}, 0x00003f80\nv_mov_b32 v{VB+11}, 0')
    k(f's_lshl_b32 s36, s35, 4\nv_add_u32 v15, s36, v2')
    k(f'v_mul_u32_u24 v12, 48, v15\nv_mul_u32_u24 v13, 3072, v3\nv_add3_u32 v12, v12, v13, 0\nv_add_u32 v12, {VV}, v12')
    for i in range(3): k(f'ds_write_b128 v12, v[{VB + 4*i}:{VB + 4*i + 3}] offset:{16*i}')
    k('s_waitcnt lgkmcnt(0)')
    feature_map(k, AK, RSTD, WB, WPH, AK, AV, AQ, WB, WB + 24)
    k(f'v_mul_u32_u24 v12, 80, v15\nv_mul_u32_u24 v13, 5120, v3\nv_add3_u32 v12, v12, v13, 0\nv_add_u32 v12, {PHI}, v12')
    for i in range(5): k(f'ds_write_b128 v12, v[{WB + 4*i}:{WB + 4*i + 3}] offset:{16*i}')
    k('s_waitcnt lgkmcnt(0)\ns_barrier')
    k('v_bfe_u32 v12, v0, 2, 2\nv_lshl_add_u32 v12, v3, 3, v12')
    k('v_and_b32 v13, 3, v0\nv_lshlrev_b32 v13, 3, v13')
    k(f's_mul_i32 s36, s35, 5120\ns_add_u32 s36, s36, {PHI}\ns_mul_i32 s37, s35, 3072\ns_add_u32 s37, s37, {VV}')
    k('v_mul_u32_u24 v11, 80, v12\nv_add3_u32 v11, v11, v13, s36\nv_mul_u32_u24 v12, 48, v12\nv_add3_u32 v12, v12, v13, s37')
    FA = WB; FBv = WB + 24
    for ks in range(2):
        for a in range(3):
            for i in range(2):
                b = FA + (ks * 3 + a) * 4 + 2 * i
                k(f'ds_read_b64_tr_b16 v[{b}:{b+1}], v11 offset:{(ks*32 + i*4) * 80 + a*32}')
        for bb in range(2):
            for i in range(2):
                b = FBv + (ks * 2 + bb) * 4 + 2 * i
                k(f'ds_read_b64_tr_b16 v[{b}:{b+1}], v12 offset:{(ks*32 + i*4) * 48 + bb*32}')
    k('s_waitcnt lgkmcnt(0)')
    KV = AK
    for ks in range(2):
        for a in range(3):
            for bb in range(2):
                d = KV + (a * 2 + bb) * 4; fa = FA + (ks*3 + a) * 4; fb = FBv + (ks*2 + bb) * 4
                c = '0' if ks == 0 else f'v[{d}:{d+3}]'
                k(f'v_mfma_f32_16x16x32_bf16 v[{d}:{d+3}], v[{fa}:{fa+3}], v[{fb}:{fb+3}], {c}')
    k(f's_lshl_b32 s36, s31, 5\ns_add_u32 s36, s36, s30\ns_mul_i32 s36, s36, {KVP_STRIDE}\ns_mul_i32 s37, s35, 1680\ns_add_u32 s36, s36, s37')
    k(f'v_mul_u32_u24 v11, 80, v2\nv_lshl_add_u32 v11, v3, 3, v11\nv_mov_b32 v13, {OOB}')
    k('v_cmp_gt_u32 vcc, 5, v2\nv_cndmask_b32 v12, v13, v11, vcc')
    k(f'v_cmp_gt_u32 vcc, 2, v3\nv_cndmask_b32 v15, v13, v11, vcc\nv_cndmask_b32 v13, v13, v12, vcc')
    for a in range(3):
        for bb in range(2):
            d = KV + (a * 2 + bb) * 4; p = AV + 4 + (a * 2 + bb) * 2
            k(f'v_cvt_pk_bf16_f32 v{p}, v{d}, v{d+1}\nv_cvt_pk_bf16_f32 v{p+1}, v{d+2}, v{d+3}')
            va = {(0, 0): 11, (0, 1): 12, (1, 0): 15, (1, 1): 13}[(1 if a == 2 else 0, bb)]
            k(f'buffer_store_dwordx2 v[{p}:{p+1}], v{va}, s[56:59], s36 offen offset:{bb*16*80 + a*32}')
    st()
    def rdB(buf, stage, u):
        a, off = waddr(stage % NSL); out = []
        for i_n in range(5):
            b = WB + buf * 20 + i_n * 4
            for i in range(2):
                out.append(f'ds_read_b64_tr_b16 v[{b+2*i}:{b+2*i+1}], v{a} offset:{off + u*5120 + i*1280 + i_n*8}')
        return out
    def mfB(buf, ks):
        out = []
        for i_n in range(5):
            b = WB + buf * 20 + i_n * 4; a = AQ + 4 * i_n; x = XR + 4 * ks
            c = '0' if ks == 0 else f'v[{a}:{a+3}]'
            out.append(f'v_mfma_f32_16x16x32_bf16 v[{a}:{a+3}], v[{b}:{b+3}], v[{x}:{x+3}], {c}')
        return out
    for ks in range(20):
        s = 10 + ks // 4; u = ks % 4
        if ks == 0:
            for r in rdB(0, s, u): k(r)
        else:
            for x in inter(rdB(ks % 2, s, u), mfB((ks - 1) % 2, ks - 1)): k(x)
        k('s_waitcnt lgkmcnt(0)')
        if u == 3 and s < 14: k('s_barrier')
    for m in mfB(1, 19): k(m)
    st()
    feature_map(k, AQ, RSTD, WB, WPH, AK, AV, XR, WB, WB + 24)
    k(f's_lshl_b32 s36, s30, 3\ns_add_u32 s36, s36, s31\ns_lshl_b32 s36, s36, 2\ns_add_u32 s36, s36, s35\ns_mul_i32 s36, s36, 5120')
    k('v_lshlrev_b32 v11, 4, v0')
    for s in range(4): k(f'buffer_store_dwordx4 v[{WB + 4*s}:{WB + 4*s + 3}], v11, s[52:55], s36 offen offset:{1024*s}')
    k(f's_add_u32 s36, s36, 4096\nbuffer_store_dwordx4 v[{WB + 16}:{WB + 19}], v11, s[52:55], s36 offen')
    st()
    st.dump(0, 35)
    k('s_endpgm')

    k(f'{Lload}:')
    st.n = 1
    k('s_sub_u32 s35, s35, 4')
    if codepf:
        k('s_getpc_b64 s[76:77]\ncode_pc_anchor:\ns_sub_u32 s76, s76, code_pc_anchor-code_begin\ns_subb_u32 s77, s77, 0\ns_mov_b32 s78, code_end-code_begin\ns_mov_b32 s79, 0x20000')
        k('s_lshl_b32 s36, s21, 2\ns_add_u32 s36, s36, s35\ns_lshl_b32 s36, s36, 7')
        k(f'v_lshlrev_b32 v20, 14, v0\nv_mov_b32 v21, {OOB}\nv_cmp_gt_u32 vcc, 4, v0\nv_cndmask_b32 v20, v21, v20, vcc')
        k('buffer_load_dword v63, v20, s[76:79], s36 offen')
    k('v_lshrrev_b32 v1, 3, v0\nv_and_b32 v2, 7, v0\nv_lshrrev_b32 v3, 4, v0')
    k('s_lshl_b32 s36, s30, 6\ns_lshl_b32 s37, s35, 4\ns_add_u32 s36, s36, s37\nv_add_u32 v20, s36, v1')
    k('v_mul_u32_u24 v20, 1280, v20\nv_xor_b32 v21, v2, v3\nv_lshl_add_u32 v4, v21, 4, v20')
    k(f'v_xor_b32 v21, 4, v21\nv_lshl_add_u32 v5, v21, 4, v20\nv_add_u32 v5, {8 * 1280}, v5')
    for i in range(5):
        k(f'v_add_u32 v20, {64*i}, v0\nv_mul_u32_u24 v21, 6554, v20\nv_lshrrev_b32 v21, 16, v21')
        k('v_mul_u32_u24 v22, 10, v21\nv_sub_u32 v22, v20, v22')
        k('v_and_b32 v23, 0x13, v21\nv_bfe_u32 v24, v21, 2, 1\nv_lshl_or_b32 v23, v24, 3, v23\nv_bfe_u32 v24, v21, 3, 1\nv_lshl_or_b32 v23, v24, 2, v23')
        k(f'v_mul_u32_u24 v23, 3840, v23\nv_lshl_add_u32 v{6+i}, v22, 4, v23')
    k(f's_lshl_b32 s36, s35, 6\nv_add_u32 v20, s36, v0\nv_cmp_gt_u32 vcc, 200, v20\nv_lshlrev_b32 v20, 4, v20\nv_mov_b32 v21, {OOB}\nv_cndmask_b32 v11, v21, v20, vcc')
    k(f's_mul_i32 s37, s31, 3200\ns_lshl_b32 s36, s35, 10\ns_add_u32 m0, s36, {MISC_W}')
    st()
    k('buffer_load_dwordx4 v11, s[48:51], s37 offen lds')
    k('s_lshl_b32 s64, s35, 11\ns_mov_b32 s66, s32')
    for j in range(10):
        k('s_lshl_b32 s67, s66, 7')
        for h in range(2):
            k(f's_add_u32 m0, s64, {XB + j*8192 + h*1024}\nbuffer_load_dwordx4 v{4+h}, s[40:43], s67 offen lds')
        k('s_add_u32 s66, s66, 1\ns_cmp_eq_u32 s66, 10\ns_cselect_b32 s66, 0, s66')
    k('s_mul_i32 s65, s35, 5120\ns_mul_i32 s69, s31, 160')
    k('s_and_b32 s68, s35, 1\ns_add_u32 s68, s68, 1\ns_mul_i32 s68, s68, 1280\ns_add_u32 s68, s68, s69')
    k('s_lshl_b32 s66, s32, 1\ns_lshr_b32 s67, s35, 1\ns_add_u32 s66, s66, s67')
    def issue(s):
        if s == 10:
            k('s_mov_b32 s68, s69\ns_lshl_b32 s66, s32, 1\ns_add_u32 s66, s66, s35\ns_cmp_ge_u32 s66, 20\ns_cselect_b32 s67, 20, 0\ns_sub_u32 s66, s66, s67')
        k(f's_mul_i32 s67, s66, {32 * 3840}\ns_add_u32 s67, s67, s68')
        for i in range(5):
            k(f's_add_u32 m0, s65, {(s % NSL) * SLOT + i*1024}\nbuffer_load_dwordx4 v{6+i}, s[44:47], s67 offen lds')
        step = 2 if s < 10 else 4
        k(f's_add_u32 s66, s66, {step}\ns_cmp_ge_u32 s66, 20\ns_cselect_b32 s67, 20, 0\ns_sub_u32 s66, s66, s67')
    for s in range(3): issue(s)
    k('s_waitcnt vmcnt(15)')
    st()
    k('s_barrier')
    k('s_waitcnt vmcnt(10)\ns_barrier')
    issued = 3
    for s in range(3, 7): issue(s)
    issued = 7
    for s in range(14):
        if s >= 1 and issued < 15: issue(issued); issued += 1
        k(f's_waitcnt vmcnt({(issued - (s + 2)) * 5})\ns_barrier')
        if s == 9:
            k('s_barrier')
    st()
    Lcs = k.label('nocs'); Lwo = k.label('wo'); Ltouch = k.label('touch')
    k(f'v_mov_b32 v21, {OOB}')
    k(f's_cmp_ge_u32 s21, 28\ns_cbranch_scc1 {Lwo}')
    k('s_cmp_ge_u32 s21, 14\ns_cselect_b32 s72, s18, s16\ns_cselect_b32 s73, s19, s17\ns_cselect_b32 s38, 14, 0\ns_cselect_b32 s36, 27, 0\ns_sub_u32 s38, s21, s38')
    k(f's_mov_b32 s74, {D * 3456}\ns_mov_b32 s75, 0x20000')
    k('s_lshr_b32 s64, s20, 2\ns_mul_i32 s65, s64, 13\ns_add_u32 s71, s38, s65\ns_add_u32 s38, s71, s64')
    k(f's_cmp_ge_u32 s38, 27\ns_cbranch_scc1 {Ltouch}')
    k('s_add_u32 s36, s36, s38\ns_and_b32 s37, s20, 3')
    k('s_mul_i32 s39, s37, 160\ns_mul_i32 s64, s35, 40\ns_add_u32 s39, s39, s64\ns_mul_i32 s39, s39, 3456\ns_lshl_b32 s38, s38, 7\ns_add_u32 s39, s39, s38')
    k('v_mul_u32_u24 v20, 3456, v1\nv_lshl_add_u32 v20, v2, 4, v20')
    for i in range(5):
        k(f'buffer_load_dwordx4 v[{24 + 4*i}:{27 + 4*i}], v20, s[72:75], s39 offen\ns_add_u32 s39, s39, {8 * 3456}')
    k('v_mov_b32 v23, 0x00003f80\nv_mov_b32 v22, 0x3f800000')
    for j in range(8): k(f'v_mov_b32 v{48 + j}, 0')
    k('s_waitcnt vmcnt(0)')
    for i in range(5):
        for j in range(4):
            k(f'v_dot2c_f32_bf16 v{48 + 2*j}, v{24 + 4*i + j}, v23\nv_dot2c_f32_bf16 v{49 + 2*j}, v{24 + 4*i + j}, v22')
    for j in range(8):
        k(f'v_add_f32_dpp v{48+j}, v{48+j}, v{48+j} row_ror:8 row_mask:0xf bank_mask:0xf')
        red_g(k, 48 + j, 60)
    k(f's_lshl_b32 s37, s37, 2\ns_add_u32 s37, s37, s35\ns_mul_i32 s37, s37, {3456 * 4}\ns_lshl_b32 s36, s36, 8\ns_add_u32 s37, s37, s36')
    k(f'v_lshlrev_b32 v20, 5, v0\nv_mov_b32 v21, {OOB}\nv_cmp_gt_u32 vcc, 8, v0\nv_cndmask_b32 v20, v21, v20, vcc')
    k('buffer_store_dwordx4 v[48:51], v20, s[60:63], s37 offen\nbuffer_store_dwordx4 v[52:55], v20, s[60:63], s37 offen offset:16')
    k(f'{Ltouch}:')
    if prefetch:
        k('s_mul_i32 s39, s35, 160\ns_mul_i32 s39, s39, 3456\ns_lshl_b32 s71, s71, 7\ns_add_u32 s39, s39, s71')
        k('v_mul_u32_u24 v20, 3456, v0\nv_cmp_gt_u32 vcc, 32, v0\nv_cndmask_b32 v24, v21, v20, vcc')
        k(f'buffer_load_dword v60, v20, s[72:75], s39 offen\ns_add_u32 s39, s39, {64 * 3456}\nbuffer_load_dword v61, v20, s[72:75], s39 offen\ns_add_u32 s39, s39, {64 * 3456}\nbuffer_load_dword v62, v24, s[72:75], s39 offen')
    k(f's_branch {Lcs}')
    k(f'{Lwo}:')
    if prefetch:
        srd(k, 72, 's14', 's15', D * 1280)
        k('s_sub_u32 s38, s21, 28\ns_lshl_b32 s38, s38, 2\ns_add_u32 s38, s38, s35\ns_mul_i32 s38, s38, 51200\ns_lshr_b32 s39, s20, 2\ns_mul_i32 s39, s39, 640\ns_add_u32 s38, s38, s39')
        for i in range(4):
            k(f'v_add_u32 v24, {64 * i}, v0\nv_cmp_gt_u32 vcc, 200, v24')
            vdiv(k, 25, 24, 5, 256)
            k('v_mul_u32_u24 v26, 5, v25\nv_sub_u32 v26, v24, v26\nv_mul_u32_u24 v25, 1280, v25\nv_lshl_add_u32 v25, v26, 7, v25\nv_cndmask_b32 v25, v21, v25, vcc')
            k(f'buffer_load_dword v{60 + i}, v25, s[72:75], s38 offen')
    k(f'{Lcs}:')
    st.dump(4, 35)
    k(f'{Lend}:\ns_endpgm')
    k.fix_hazards_fast()
    errs = k.check_waits()
    if errs: print(name, 'WAIT ERRS', errs[:10])
    return k, (name, 256, 512, LDS1)

def k1b_kernel(name, stamps=False):
    k = Kernel(name)
    Lend = k.label('end')
    k(f's_cmp_ge_u32 s2, 256\ns_cbranch_scc1 {Lend}')
    k(f's_load_dwordx2 s[4:5], s[0:1], {WS}')
    tile_map(k)
    k('v_mov_b32 v4, v0\nv_lshrrev_b32 v1, 6, v0\nv_and_b32 v0, 63, v0\nv_readfirstlane_b32 s35, v1')
    k('s_waitcnt lgkmcnt(0)')
    srd_ws(k, 52, 4, WS_PHIQ, 32 * 8 * 4 * 5 * 1024)
    srd_ws(k, 56, 4, WS_KVP, 256 * KVP_STRIDE)
    srd_ws(k, 60, 4, WS_O, S * 1280)
    RED = 0; KVT = 4 * 7 * 2048; ZER = KVT + 7168
    LDS = ZER + 2048
    k('v_and_b32 v2, 15, v0\nv_lshrrev_b32 v3, 4, v0\nv_lshlrev_b32 v5, 4, v0')
    PQ = 8
    k(f's_lshl_b32 s36, s30, 3\ns_add_u32 s36, s36, s31\ns_lshl_b32 s36, s36, 2\ns_add_u32 s36, s36, s35\ns_mul_i32 s36, s36, 5120')
    for s in range(4): k(f'buffer_load_dwordx4 v[{PQ + 4*s}:{PQ + 4*s + 3}], v5, s[52:55], s36 offen offset:{1024*s}')
    k(f's_add_u32 s36, s36, 4096\nbuffer_load_dwordx4 v[{PQ + 16}:{PQ + 19}], v5, s[52:55], s36 offen')
    k('v_mov_b32 v28, 0\nv_mov_b32 v29, 0\nv_lshlrev_b32 v6, 3, v4')
    k(f'ds_write_b64 v6, v[28:29] offset:{ZER}')
    AC = 32; LD = 88
    for i in range(56): k(f'v_mov_b32 v{AC+i}, 0')
    k('v_mov_b32 v30, 0x00003f80\nv_mov_b32 v31, 0x3f800000')
    k(f's_lshl_b32 s36, s31, 5\ns_lshl_b32 s37, s35, 3\ns_add_u32 s36, s36, s37\ns_mul_i32 s36, s36, {KVP_STRIDE}')
    def ld(p):
        b = LD + (p % 2) * 28
        for i in range(7):
            o = i * 1024
            if i == 4: k('s_add_u32 s37, s36, 4096')
            k(f'buffer_load_dwordx4 v[{b + 4*i}:{b + 4*i + 3}], v5, s[56:59], {"s36" if i < 4 else "s37"} offen offset:{o % 4096}')
        k(f's_add_u32 s36, s36, {KVP_STRIDE}')
    ld(0)
    for p in range(8):
        if p < 7: ld(p + 1)
        k(f's_waitcnt vmcnt({7 if p < 7 else 0})')
        b = LD + (p % 2) * 28
        for i in range(28):
            k(f'v_dot2c_f32_bf16 v{AC + 2*i}, v{b+i}, v30\nv_dot2c_f32_bf16 v{AC + 2*i + 1}, v{b+i}, v31')
    k(f's_mul_i32 s36, s35, {7 * 2048}\nv_lshlrev_b32 v6, 5, v0\nv_add_u32 v6, s36, v6')
    for i in range(7):
        k(f'ds_write_b128 v6, v[{AC + 8*i}:{AC + 8*i + 3}] offset:{i*2048}\nds_write_b128 v6, v[{AC + 8*i + 4}:{AC + 8*i + 7}] offset:{i*2048 + 16}')
    k('s_waitcnt lgkmcnt(0)\ns_barrier')
    k('v_lshlrev_b32 v6, 5, v4\nv_lshlrev_b32 v7, 4, v4')
    for half in range(2):
        if half == 1:
            k('v_cmp_gt_u32 vcc, 192, v4\ns_and_saveexec_b64 s[64:65], vcc')
        for w in range(4):
            k(f'ds_read_b128 v[{LD + 8*w}:{LD + 8*w + 3}], v6 offset:{w*14336 + half*8192}\nds_read_b128 v[{LD + 8*w + 4}:{LD + 8*w + 7}], v6 offset:{w*14336 + half*8192 + 16}')
        k('s_waitcnt lgkmcnt(0)')
        for j in range(8):
            k(f'v_add_f32 v{LD+j}, v{LD+j}, v{LD+8+j}\nv_add_f32 v{LD+16+j}, v{LD+16+j}, v{LD+24+j}\nv_add_f32 v{LD+j}, v{LD+j}, v{LD+16+j}')
        for j in range(4): k(f'v_cvt_pk_bf16_f32 v{LD+32+j}, v{LD+2*j}, v{LD+2*j+1}')
        k(f'ds_write_b128 v7, v[{LD+32}:{LD+35}] offset:{KVT + half*4096}')
        if half == 1:
            k('s_mov_b64 exec, s[64:65]')
    k('s_waitcnt lgkmcnt(0)\ns_barrier')
    AF = 32
    k('v_lshrrev_b32 v6, 2, v2\nv_cmp_eq_u32 vcc, v6, v3')
    k(f'v_mul_u32_u24 v6, 1680, v3\nv_and_b32 v7, 3, v0\nv_mul_u32_u24 v7, 80, v7\nv_add3_u32 v6, v6, v7, 0\nv_add_u32 v6, {KVT}, v6\nv_mov_b32 v7, {ZER}\nv_cndmask_b32 v6, v7, v6, vcc')
    for i in range(6):
        for s in range(5):
            b = AF + (i * 5 + s) * 4
            k(f'ds_read_b128 v[{b}:{b+3}], v6 offset:{i*320 + s*16}')
    k('s_waitcnt lgkmcnt(0) vmcnt(0)')
    O = 152
    for s in range(5):
        for i in range(6):
            b = AF + (i * 5 + s) * 4; d = O + 4 * i
            c = '0' if s == 0 else f'v[{d}:{d+3}]'
            k(f'v_mfma_f32_16x16x32_bf16 v[{d}:{d+3}], v[{b}:{b+3}], v[{PQ + 4*s}:{PQ + 4*s + 3}], {c}')
    k(f'v_add_f32 v6, {f2u(1e-6)}, v{O+20}\nv_rcp_f32 v6, v6')
    for i in range(10):
        k(f'v_mul_f32 v{O+2*i}, v6, v{O+2*i}\nv_mul_f32 v{O+2*i+1}, v6, v{O+2*i+1}\nv_cvt_pk_bf16_f32 v{8+i}, v{O+2*i}, v{O+2*i+1}')
    k('s_lshl_b32 s36, s30, 6\ns_lshl_b32 s37, s35, 4\ns_add_u32 s36, s36, s37\ns_mul_i32 s36, s36, 1280\ns_mul_i32 s37, s31, 160\ns_add_u32 s36, s36, s37')
    k('v_mul_u32_u24 v6, 1280, v2\nv_mul_u32_u24 v7, 40, v3\nv_add_u32 v6, v6, v7')
    k('buffer_store_dwordx4 v[8:11], v6, s[60:63], s36 offen\nbuffer_store_dwordx4 v[12:15], v6, s[60:63], s36 offen offset:16\nbuffer_store_dwordx2 v[16:17], v6, s[60:63], s36 offen offset:32')
    k(f'{Lend}:\ns_endpgm')
    k.fix_hazards_fast()
    errs = k.check_waits()
    if errs: print(name, 'WAIT ERRS', errs[:10])
    return k, (name, 256, 256, LDS)
```

```python
from common import *
from k1 import tile_map, LOG2E
WS_FLAG = 0x0F00000
SLOT = 20480; NSL = 7
XB = 3 * SLOT
MISC_W = NSL * SLOT
MISC_Z = MISC_W + 3200
FL = MISC_W + 4096
KVT = FL + 256
ZER = KVT + 7168
LDS1 = ZER + 2048
PHI = 1 * SLOT
VV = 2 * SLOT
F_X, F_SEEN = 15, 16
R_X, R_K, R_V3, R_PHI, R_ST = 0, 1, 2, 3, 4
NCS = 8
G1_STRIDE = 9216
WS_G1 = 0x0300000
WS_G2 = 0x0580000

def feature_map(k, ACC, RS2, QB, WPH, P, EP, EM, OUTP, T):
    for i in range(10):
        k(f'v_pk_mul_f32 v[{ACC + 2*i}:{ACC + 2*i + 1}], v[{ACC + 2*i}:{ACC + 2*i + 1}], v[{RS2}:{RS2+1}] op_sel_hi:[1,0]')
    for i in range(10):
        k(f'v_cvt_pk_bf16_f32 v{QB + i}, v{ACC + 2*i}, v{ACC + 2*i + 1}')
    k(f'v_mov_b32 v{QB + 10}, 0\nv_mov_b32 v{QB + 11}, 0\ns_waitcnt lgkmcnt(0)')
    for i in range(5):
        for s in range(3):
            w = WPH + (i * 3 + s) * 4; p = P + 4 * i; b = QB + 4 * s
            c = '0' if s == 0 else f'v[{p}:{p+3}]'
            k(f'v_mfma_f32_16x16x32_bf16 v[{p}:{p+3}], v[{w}:{w+3}], v[{b}:{b+3}], {c}')
    mx, mn = T, T + 2
    k(f'v_max3_f32 v{mx}, v{P}, v{P+1}, v{P+2}\nv_min3_f32 v{mn}, v{P}, v{P+1}, v{P+2}')
    for i in range(3, 19, 2):
        k(f'v_max3_f32 v{mx}, v{mx}, v{P+i}, v{P+i+1}\nv_min3_f32 v{mn}, v{mn}, v{P+i}, v{P+i+1}')
    k(f'v_max_f32 v{mx}, v{mx}, v{P+19}\nv_min_f32 v{mn}, v{mn}, v{P+19}')
    k(f'v_mov_b32 v{T+4}, {f2u(LOG2E)}')
    k(f'v_mul_f32 v{mx}, v{T+4}, v{mx}\nv_mul_f32 v{mn}, v{T+4}, v{mn}')
    L = f'v[{T+4}:{T+5}]'
    for i in range(0, 20, 2):
        k(f'v_pk_fma_f32 v[{EP+i}:{EP+i+1}], v[{P+i}:{P+i+1}], {L}, v[{mx}:{mx+1}] op_sel_hi:[1,0,0] neg_lo:[0,0,1] neg_hi:[0,0,1]')
        k(f'v_pk_fma_f32 v[{EM+i}:{EM+i+1}], v[{P+i}:{P+i+1}], {L}, v[{mn}:{mn+1}] op_sel_hi:[1,0,0] neg_lo:[1,0,0] neg_hi:[1,0,0]')
    for i in range(20):
        k(f'v_exp_f32 v{EP+i}, v{EP+i}\nv_exp_f32 v{EM+i}, v{EM+i}')
    sp, sm = T, T + 2
    k(f'v_pk_add_f32 v[{sp}:{sp+1}], v[{EP}:{EP+1}], v[{EP+2}:{EP+3}]\nv_pk_add_f32 v[{sm}:{sm+1}], v[{EM}:{EM+1}], v[{EM+2}:{EM+3}]')
    for i in range(4, 20, 2):
        k(f'v_pk_add_f32 v[{sp}:{sp+1}], v[{sp}:{sp+1}], v[{EP+i}:{EP+i+1}]\nv_pk_add_f32 v[{sm}:{sm+1}], v[{sm}:{sm+1}], v[{EM+i}:{EM+i+1}]')
    k(f'v_add_f32 v{sp}, v{sp}, v{sp+1}\nv_add_f32 v{sm}, v{sm}, v{sm+1}')
    k(f'v_rcp_f32 v{sp}, v{sp}\nv_rcp_f32 v{sm}, v{sm}')
    for i in range(0, 20, 2):
        k(f'v_pk_mul_f32 v[{EP+i}:{EP+i+1}], v[{EP+i}:{EP+i+1}], v[{sp}:{sp+1}] op_sel_hi:[1,0]\nv_pk_mul_f32 v[{EM+i}:{EM+i+1}], v[{EM+i}:{EM+i+1}], v[{sm}:{sm+1}] op_sel_hi:[1,0]')
    for i in range(10):
        k(f'v_cvt_pk_bf16_f32 v{OUTP+i}, v{EP+2*i}, v{EP+2*i+1}\nv_cvt_pk_bf16_f32 v{OUTP+10+i}, v{EM+2*i}, v{EM+2*i+1}')

def k1_kernel(name, stamps=False, opt=None):
    opt = opt or {}
    CAP = opt.get('cap', 7)
    k = Kernel(name)
    Lend = k.label('end'); Lcomp = k.label('comp')
    k(f's_cmp_ge_u32 s2, 256\ns_cbranch_scc1 {Lend}')
    st = Stamps(k, stamps, 3); st()
    k(f's_load_dwordx4 s[8:11], s[0:1], {A_X}\ns_load_dwordx4 s[12:15], s[0:1], {A_WPHI}\ns_load_dwordx4 s[16:19], s[0:1], {B_WG}\ns_load_dwordx2 s[4:5], s[0:1], {WS}\ns_load_dwordx2 s[6:7], s[0:1], {DBG}\ns_load_dwordx2 s[26:27], s[0:1], {B_WD}')
    k('v_lshrrev_b32 v1, 6, v0\nv_and_b32 v0, 63, v0')
    if opt.get('map81'):
        k('s_and_b32 s20, s2, 7\ns_lshr_b32 s21, s2, 3\ns_and_b32 s23, s21, 3\ns_lshl_b32 s30, s20, 2\ns_add_u32 s30, s30, s23\ns_lshr_b32 s31, s21, 2')
        k('s_mul_i32 s32, s23, 3\ns_add_u32 s32, s32, s31\ns_cmp_ge_u32 s32, 10\ns_cselect_b32 s24, 10, 0\ns_sub_u32 s32, s32, s24')
    else:
        tile_map(k)
    k('v_readfirstlane_b32 s35, v1')
    k(f's_cmp_lt_u32 s35, 4\ns_cbranch_scc1 {Lcomp}')

    k('s_sub_u32 s35, s35, 4')
    k('v_lshrrev_b32 v1, 3, v0\nv_and_b32 v2, 7, v0\nv_lshrrev_b32 v3, 4, v0')
    k('s_lshl_b32 s36, s30, 6\ns_lshl_b32 s37, s35, 4\ns_add_u32 s36, s36, s37\nv_add_u32 v20, s36, v1')
    k('v_mul_u32_u24 v20, 1280, v20\nv_xor_b32 v21, v2, v3\nv_lshl_add_u32 v4, v21, 4, v20')
    k(f'v_xor_b32 v21, 4, v21\nv_lshl_add_u32 v5, v21, 4, v20\nv_add_u32 v5, {8 * 1280}, v5')
    k('s_lshl_b32 s64, s35, 11\ns_mov_b32 s66, s32')
    k('s_waitcnt lgkmcnt(0)')
    srd(k, 40, 's8', 's9', S * 1280)
    st()
    vm = []
    for j in range(10):
        k('s_lshl_b32 s67, s66, 7')
        for h in range(2):
            k(f's_add_u32 m0, s64, {XB + j*8192 + h*1024}\nbuffer_load_dwordx4 v{4+h}, s[40:43], s67 offen lds'); vm.append(F_X)
        k('s_add_u32 s66, s66, 1\ns_cmp_eq_u32 s66, 10\ns_cselect_b32 s66, 0, s66')
    srd(k, 44, 's10', 's11', D * 3840)
    for i in range(5):
        k(f'v_add_u32 v20, {64*i}, v0\nv_mul_u32_u24 v21, 6554, v20\nv_lshrrev_b32 v21, 16, v21')
        k('v_mul_u32_u24 v22, 10, v21\nv_sub_u32 v22, v20, v22')
        k('v_and_b32 v23, 0x13, v21\nv_bfe_u32 v24, v21, 2, 1\nv_lshl_or_b32 v23, v24, 3, v23\nv_bfe_u32 v24, v21, 3, 1\nv_lshl_or_b32 v23, v24, 2, v23')
        k(f'v_mul_u32_u24 v23, 3840, v23\nv_lshl_add_u32 v{6+i}, v22, 4, v23')
    ring = Ring(k, FL, 12, 13, 14, 15, 70)
    ring.setup(35, False)
    k('s_mul_i32 s65, s35, 5120\ns_mul_i32 s69, s31, 160')
    k('s_lshl_b32 s66, s32, 1\ns_add_u32 s66, s66, s35\ns_cmp_ge_u32 s66, 20\ns_cselect_b32 s67, 20, 0\ns_sub_u32 s66, s66, s67')
    srd(k, 48, 's12', 's13', 32 * 800)
    k(f's_lshl_b32 s36, s35, 6\nv_add_u32 v20, s36, v0\nv_cmp_gt_u32 vcc, 200, v20\nv_lshlrev_b32 v20, 4, v20\nv_mov_b32 v21, {OOB}\nv_cndmask_b32 v11, v21, v20, vcc')
    k('s_barrier')
    order = [F_X] + list(range(15)); pub = [0]
    cnt = {F_X: 20, **{s: 5 for s in range(15)}}; cnt[1] = 6
    def publish(final=False):
        while pub[0] < len(order):
            j = order[pub[0]]
            idxs = [i for i, t in enumerate(vm) if t == j]
            if len(idxs) < cnt[j]: return
            n = len(vm) - 1 - idxs[-1]
            cap = opt.get('capx', 3) if j == F_X else CAP
            if n < cap and not final: return
            k(f's_waitcnt vmcnt({n})\n{ring.set_full(j)}')
            if j in (F_X, 4, 9): st()
            pub[0] += 1
    slow_extra = []
    def need_free(r, s):
        k(f'{ring.rd_free(r)}\ns_waitcnt lgkmcnt(0)')
        Ls = k.label('lslow'); Lb = k.label('lback'); Lp = k.label('lpoll')
        k(f'v_readfirstlane_b32 s70, v15\ns_cmp_eq_u32 s70, {ALL4}\ns_cbranch_scc0 {Ls}\n{Lb}:')
        pend = order[pub[0]:order.index(s)]
        txt = f'{Ls}:\n'
        for j in pend:
            idxs = [i for i, t in enumerate(vm) if t == j]
            txt += f's_waitcnt vmcnt({len(vm) - 1 - idxs[-1]})\n{ring.set_full(j)}\n'
        txt += f'{Lp}:\n{ring.rd_free(r)}\ns_waitcnt lgkmcnt(0)\nv_readfirstlane_b32 s70, v15\ns_cmp_eq_u32 s70, {ALL4}\ns_cbranch_scc1 {Lb}\ns_sleep 1\ns_branch {Lp}'
        slow_extra.append(txt)
    def side_loads():
        L3 = k.label('sl3'); Le = k.label('sle')
        k(f's_cmp_eq_u32 s35, 0\ns_cbranch_scc1 {Le}\ns_cmp_eq_u32 s35, 3\ns_cbranch_scc1 {L3}\ns_cmp_ge_u32 s2, 216\ns_cbranch_scc1 {Le}')
        k('s_lshr_b32 s36, s2, 2\ns_and_b32 s37, s2, 3\ns_lshl_b32 s37, s37, 1\ns_add_u32 s37, s37, s35\ns_sub_u32 s37, s37, 1')
        k('s_cmp_ge_u32 s36, 27\ns_cselect_b32 s72, s18, s16\ns_cselect_b32 s73, s19, s17\ns_cselect_b32 s38, 27, 0\ns_sub_u32 s38, s36, s38')
        k(f's_mov_b32 s74, {D * 3456}\ns_mov_b32 s75, 0x20000')
        k(f's_mul_i32 s39, s37, {80 * 3456}\ns_lshl_b32 s38, s38, 7\ns_add_u32 s39, s39, s38')
        k('v_mul_u32_u24 v20, 3456, v1\nv_lshl_add_u32 v20, v2, 4, v20')
        for i in range(10):
            k(f'buffer_load_dwordx4 v[{24 + 4*i}:{27 + 4*i}], v20, s[72:75], s39 offen\ns_add_u32 s39, s39, {8 * 3456}')
        k(f's_branch {Le}\n{L3}:')
        if opt.get('prefetch', True):
            srd(k, 52, 's14', 's15', D * 1280); srd(k, 72, 's26', 's27', F * 1280)
            k('v_lshlrev_b32 v20, 7, v0\nv_cmp_gt_u32 vcc, 25, v0\nv_cndmask_b32 v22, v21, v20, vcc\nv_cmp_gt_u32 vcc, 4, v0\nv_cndmask_b32 v23, v21, v20, vcc')
            k(f's_mul_i32 s36, s2, {25 * 128}\ns_mul_i32 s37, s2, {68 * 128}\ns_add_u32 s38, s37, 8192')
            k('buffer_load_dword v16, v22, s[52:55], s36 offen\nbuffer_load_dword v17, v20, s[72:75], s37 offen\nbuffer_load_dword v18, v23, s[72:75], s38 offen')
        k(f'{Le}:')
    SEG = [1, 2, 0]
    for s in range(15):
        if s == 3: need_free(R_X, s)
        if s == 7: need_free(R_K, s)
        if s == 12: need_free(R_V3, s)
        if s == opt.get('side_at', 10):
            publish(True)
            side_loads()
        k(f's_mul_i32 s67, s66, {32 * 3840}\ns_add_u32 s67, s67, s69\ns_add_u32 s67, s67, {SEG[s // 5] * 1280}')
        for i in range(5):
            k(f's_add_u32 m0, s65, {(s % NSL) * SLOT + i*1024}\nbuffer_load_dwordx4 v{6+i}, s[44:47], s67 offen lds'); vm.append(s); publish()
        if s == 1:
            k(f's_mul_i32 s37, s31, 3200\ns_lshl_b32 s36, s35, 10\ns_add_u32 m0, s36, {MISC_W}')
            k('buffer_load_dwordx4 v11, s[48:51], s37 offen lds'); vm.append(1); publish()
        k('s_add_u32 s66, s66, 4\ns_cmp_ge_u32 s66, 20\ns_cselect_b32 s67, 20, 0\ns_sub_u32 s66, s66, s67')
    publish(True)
    st()
    Lcs = k.label('cs'); Ldone = k.label('ldone'); Ltch = k.label('tch'); Lh2 = k.label('h2')
    k(f's_sub_u32 s36, s35, 1\ns_cmp_lt_u32 s36, 2\ns_cbranch_scc1 {Lcs}')
    srd(k, 52, 's6', 's7', 256); srd_ws(k, 56, 4, WS_G1, 256 * G1_STRIDE); srd_ws(k, 60, 4, WS_G2, 8 * G1_STRIDE)
    k(f's_cmp_eq_u32 s35, 0\ns_cselect_b32 s36, 0, 32\ns_add_u32 s36, s36, s30\ns_cmp_ge_u32 s36, 35\ns_cbranch_scc1 {Ltch}')
    Lpn = k.label('pn'); Lgn = k.label('gn'); Lps = k.label('ps'); Lgs = k.label('gs'); Lp1 = k.label('p1'); Ld1 = k.label('d1')
    k(f'v_mov_b32 v23, 0\ns_mov_b32 s71, 100000\n{Lpn}:')
    k(f'buffer_load_dword v24, v23, s[52:55], 0 offen sc1\ns_waitcnt vmcnt(0)\nv_readfirstlane_b32 s72, v24\ns_cmp_lg_u32 s72, 0\ns_cbranch_scc1 {Lgn}\ns_sleep 4\ns_sub_u32 s71, s71, 1\ns_cmp_lg_u32 s71, 0\ns_cbranch_scc1 {Lpn}\n{Lgn}:')
    k(f's_lshl_b32 s37, s31, 5\ns_mul_i32 s37, s37, {G1_STRIDE}\ns_lshl_b32 s38, s36, 8\ns_add_u32 s37, s37, s38')
    k(f'v_and_b32 v20, 15, v0\nv_lshlrev_b32 v20, 4, v20\nv_mul_u32_u24 v22, {G1_STRIDE}, v3\nv_add_u32 v22, v22, v20')
    k('v_mov_b32 v4, 0x00003f80\nv_mov_b32 v5, 0x3f800000')
    k(f'{Lps}:\n{ring.rd_free(R_ST)}\ns_waitcnt lgkmcnt(0)\nv_readfirstlane_b32 s70, v15\ns_cmp_eq_u32 s70, {ALL4}\ns_cbranch_scc1 {Lgs}\ns_sleep 1\ns_branch {Lps}\n{Lgs}:')
    st()
    if opt.get('pre1', 0): k(f's_sleep {opt["pre1"]}')
    k(f's_mov_b32 s71, 100000\n{Lp1}:\ns_mov_b32 s38, s37')
    for i in range(8):
        k(f'buffer_load_dwordx4 v[{32 + 4*i}:{35 + 4*i}], v22, s[56:59], s38 offen sc1\ns_add_u32 s38, s38, {4 * G1_STRIDE}')
    k('s_waitcnt vmcnt(0)')
    k('v_xor_b32 v25, s72, v35')
    for i in range(1, 8): k(f'v_xor_b32 v26, s72, v{35 + 4*i}\nv_or_b32 v25, v25, v26')
    k(f'v_cmp_ne_u32 vcc, 0, v25\ns_cmp_eq_u64 vcc, 0\ns_cbranch_scc1 {Ld1}\ns_sleep 1\ns_sub_u32 s71, s71, 1\ns_cmp_lg_u32 s71, 0\ns_cbranch_scc1 {Lp1}\n{Ld1}:')
    st()
    for j in range(3):
        k(f'v_lshlrev_b32 v{64 + 2*j}, 16, v{32 + j}\nv_and_b32 v{65 + 2*j}, 0xffff0000, v{32 + j}')
    for i in range(1, 8):
        for j in range(3):
            k(f'v_lshlrev_b32 v25, 16, v{32 + 4*i + j}\nv_and_b32 v26, 0xffff0000, v{32 + 4*i + j}\nv_add_f32 v{64 + 2*j}, v{64 + 2*j}, v25\nv_add_f32 v{65 + 2*j}, v{65 + 2*j}, v26')
    for j in range(6): k(f'v_mov_b32 v{72 + j}, v{64 + j}')
    for j in range(6): k(f'v_permlane32_swap_b32 v{64 + j}, v{72 + j}')
    for j in range(6): k(f'v_add_f32 v{64 + j}, v{64 + j}, v{72 + j}')
    for j in range(6): k(f'v_mov_b32 v{72 + j}, v{64 + j}')
    for j in range(6): k(f'v_permlane16_swap_b32 v{64 + j}, v{72 + j}')
    for j in range(6): k(f'v_add_f32 v{64 + j}, v{64 + j}, v{72 + j}')
    for j in range(3): k(f'v_cvt_pk_bf16_f32 v{28 + j}, v{64 + 2*j}, v{65 + 2*j}')
    k(f'v_mov_b32 v31, s72\ns_mul_i32 s37, s31, {G1_STRIDE}\ns_lshl_b32 s38, s36, 8\ns_add_u32 s38, s38, s37')
    k('s_mov_b64 exec, 0xffff\nbuffer_store_dwordx4 v[28:31], v20, s[60:63], s38 offen sc1\ns_mov_b64 exec, -1')
    k(f's_cmp_eq_u32 s35, 0\ns_cbranch_scc1 {Lh2}')
    k(f'{Ltch}:')
    k(f's_branch {Ldone}')
    k(f'{Lh2}:')
    Lp2 = k.label('p2'); Ld2 = k.label('d2')
    k(f'v_lshlrev_b32 v20, 4, v0\nv_mul_u32_u24 v22, 12, v0\nv_add_u32 v22, {KVT}, v22\nv_add_u32 v23, 8192, v20\nv_cmp_gt_u32 vcc, 48, v0\nv_cndmask_b32 v23, v20, v23, vcc')
    if opt.get('pre2', 0): k(f's_sleep {opt["pre2"]}')
    k(f's_add_u32 s38, s37, 4096\ns_mov_b32 s71, 100000\n{Lp2}:')
    for i in range(8):
        k(f'buffer_load_dwordx4 v[{32 + 4*i}:{35 + 4*i}], v20, s[60:63], {"s37" if i < 4 else "s38"} offen offset:{(i % 4) * 1024} sc1')
    k('buffer_load_dwordx4 v[64:67], v23, s[60:63], s37 offen sc1')
    k('s_waitcnt vmcnt(0)')
    k('v_xor_b32 v25, s72, v35')
    for i in range(1, 9): k(f'v_xor_b32 v26, s72, v{35 + 4*i}\nv_or_b32 v25, v25, v26')
    k(f'v_cmp_ne_u32 vcc, 0, v25\ns_cmp_eq_u64 vcc, 0\ns_cbranch_scc1 {Ld2}\ns_sleep 1\ns_sub_u32 s71, s71, 1\ns_cmp_lg_u32 s71, 0\ns_cbranch_scc1 {Lp2}\n{Ld2}:')
    st()
    for i in range(9):
        k(f'ds_write_b32 v22, v{32 + 4*i} offset:{768*i}\nds_write_b32 v22, v{33 + 4*i} offset:{768*i + 4}\nds_write_b32 v22, v{34 + 4*i} offset:{768*i + 8}')
    k(ring.set_full(F_SEEN))
    k(f's_branch {Ldone}')
    k(f'{Lcs}:')
    k(f's_cmp_ge_u32 s2, 216\ns_cbranch_scc1 {Ldone}')
    srd_ws(k, 60, 4, WS_CS, NCS * 3456 * 4)
    k('s_lshr_b32 s36, s2, 2\ns_and_b32 s37, s2, 3\ns_lshl_b32 s37, s37, 1\ns_add_u32 s37, s37, s35\ns_sub_u32 s37, s37, 1')
    A = 64
    for i in range(10):
        for j in range(4):
            if i == 0: k(f'v_lshlrev_b32 v{A + 2*j}, 16, v{24 + j}\nv_and_b32 v{A + 1 + 2*j}, 0xffff0000, v{24 + j}')
            else: k(f'v_lshlrev_b32 v22, 16, v{24 + 4*i + j}\nv_and_b32 v23, 0xffff0000, v{24 + 4*i + j}\nv_add_f32 v{A + 2*j}, v{A + 2*j}, v22\nv_add_f32 v{A + 1 + 2*j}, v{A + 1 + 2*j}, v23')
    for j in range(8): k(f'v_add_f32_dpp v{A+j}, v{A+j}, v{A+j} row_ror:8 row_mask:0xf bank_mask:0xf')
    for j in range(8): red_g(k, A + j, 22 + j % 2)
    k(f's_mul_i32 s37, s37, {3456 * 4}\ns_lshl_b32 s36, s36, 8\ns_add_u32 s37, s37, s36')
    k('v_lshlrev_b32 v20, 5, v0\nv_cmp_gt_u32 vcc, 8, v0\nv_cndmask_b32 v20, v21, v20, vcc')
    k(f'buffer_store_dwordx4 v[{A}:{A+3}], v20, s[60:63], s37 offen\nbuffer_store_dwordx4 v[{A+4}:{A+7}], v20, s[60:63], s37 offen offset:16')
    k(f'{Ldone}:')
    st.dump(4, 35)
    k(f'{Lend}:\ns_endpgm')
    for t in slow_extra: k(t)

    k(f'{Lcomp}:')
    st.n = 1
    XR = 24; WB = 104; WPH = 104; AK = 164; AV = 184; GR = 204; PK = 208; TMP = 228
    ring = Ring(k, FL, 16, 17, 18, 19, 70)
    ring.setup(35, True)
    k(f'v_mov_b32 v15, {OOB}')
    k('s_lshl_b32 s36, s35, 6\nv_add_u32 v20, s36, v0\nv_lshlrev_b32 v20, 3, v20\nv_mov_b32 v22, 0\nv_mov_b32 v23, 0')
    k(f'v_add_u32 v20, {ZER}, v20\nds_write_b64 v20, v[22:23]')
    if opt.get('codepf', True):
        k('s_getpc_b64 s[76:77]\ncode_pc_anchor:\ns_sub_u32 s76, s76, code_pc_anchor-code_begin\ns_subb_u32 s77, s77, 0\ns_mov_b32 s78, code_end-code_begin\ns_mov_b32 s79, 0x20000')
        k('s_lshl_b32 s36, s21, 2\ns_add_u32 s36, s36, s35\ns_lshl_b32 s36, s36, 7')
        k('v_lshlrev_b32 v11, 14, v0\nv_cmp_gt_u32 vcc, 4, v0\nv_cndmask_b32 v11, v15, v11, vcc')
        k('buffer_load_dword v1, v11, s[76:79], s36 offen')
    k('v_and_b32 v2, 15, v0\nv_lshrrev_b32 v3, 4, v0')
    k('v_lshrrev_b32 v8, 1, v2\nv_xor_b32 v8, v3, v8\nv_lshlrev_b32 v8, 4, v8\nv_lshl_add_u32 v4, v2, 7, v8')
    k(f's_lshl_b32 s36, s35, 11\ns_add_u32 s36, s36, {XB}\nv_add_u32 v4, s36, v4\nv_xor_b32 v5, 64, v4')
    k(f'v_add_u32 v6, {5 * 8192}, v4\nv_add_u32 v7, {5 * 8192}, v5')
    k('v_lshrrev_b32 v11, 5, v0\nv_lshlrev_b32 v11, 4, v11\nv_bfe_u32 v12, v0, 4, 1\nv_lshl_add_u32 v11, v12, 2, v11\nv_bfe_u32 v12, v0, 2, 2\nv_add_u32 v11, v11, v12')
    k('v_mul_u32_u24 v11, 160, v11\nv_and_b32 v12, 3, v0\nv_mul_u32_u24 v12, 40, v12\nv_add_u32 v8, v11, v12')
    k(f'v_add_u32 v9, {3 * SLOT}, v8\nv_add_u32 v10, {6 * SLOT}, v8')
    k('v_and_b32 v11, 3, v0\nv_cmp_eq_u32 vcc, v11, v3')
    k(f'v_mul_u32_u24 v11, 800, v3\nv_bfe_u32 v12, v0, 2, 2\nv_mul_u32_u24 v12, 40, v12\nv_add3_u32 v11, v11, v12, 0\nv_add_u32 v11, {MISC_W}, v11')
    k(f'v_mov_b32 v12, {MISC_Z}\nv_cndmask_b32 v11, v12, v11, vcc')
    k('s_waitcnt lgkmcnt(0)')
    k('s_barrier')
    srd_ws(k, 56, 4, WS_G1, 256 * G1_STRIDE)
    srd_ws(k, 60, 4, WS_O, S * 1280)
    srd(k, 40, 's6', 's7', 256)
    Lnn = k.label('nononce')
    k(f's_or_b32 s36, s2, s35\ns_cmp_lg_u32 s36, 0\ns_cbranch_scc1 {Lnn}')
    srd_ws(k, 44, 4, WS_FLAG, 0x10080)
    k('v_mov_b32 v20, 0\ns_mov_b32 s36, 0x10000\ns_mov_b64 exec, 1')
    k('buffer_load_dword v21, v20, s[44:47], s36 offen sc1\ns_waitcnt vmcnt(0)')
    k('v_add_u32 v21, 1, v21\nv_max_u32 v21, 1, v21')
    k('buffer_store_dword v21, v20, s[44:47], s36 offen sc1\nbuffer_store_dword v21, v20, s[40:43], 0 offen sc1\ns_mov_b64 exec, -1')
    k(f'{Lnn}:')
    st()
    k(f'{ring.rd_full(F_X)}\ns_waitcnt lgkmcnt(0)')
    ring.check_full(F_X)
    st()
    for ks in range(20):
        ln, ksl = ks // 2, ks % 2
        a = (4 if ln < 5 else 6) + ksl
        k(f'ds_read_b128 v[{XR + 4*ks}:{XR + 4*ks + 3}], v{a} offset:{(ln % 5) * 8192}')
    T = TMP
    k(f'v_mov_b32 v20, 0x3f803f80')
    for i in range(4): k(f'v_mov_b32 v{T+i}, 0')
    for ks in range(20):
        if ks % 4 == 0: k(f's_waitcnt lgkmcnt({min(15, 16 - ks)})')
        for i in range(4): k(f'v_dot2c_f32_bf16 v{T + i}, v{XR + 4*ks + i}, v20')
        if ks == 16: k(ring.set_free(R_X))
    k(f'v_add_f32 v{T}, v{T}, v{T+1}\nv_add_f32 v{T+2}, v{T+2}, v{T+3}\nv_add_f32 v{T}, v{T}, v{T+2}')
    red_g(k, T, T + 1)
    k(f'v_mul_f32 v12, {f2u(-1.0/640)}, v{T}')
    for i in range(80):
        a = T + 4 + 2 * (i % 4)
        k(f'v_lshlrev_b32 v{a}, 16, v{XR+i}\nv_and_b32 v{a+1}, 0xffff0000, v{XR+i}\nv_pk_add_f32 v[{a}:{a+1}], v[{a}:{a+1}], v[12:13] op_sel_hi:[1,0]\nv_cvt_pk_bf16_f32 v{XR+i}, v{a}, v{a+1}')
        if i == 70: k(ring.rd_full(0))
    st()
    def waddr(slot): return (8 + slot // 3, (slot % 3) * SLOT)
    def rd(seg, ks):
        stage = seg * 5 + ks // 4; a, off = waddr(stage % NSL); out = []
        for i_n in range(5):
            b = WB + (ks % 3) * 20 + i_n * 4
            for i in range(2):
                out.append(f'ds_read_b64_tr_b16 v[{b+2*i}:{b+2*i+1}], v{a} offset:{off + (ks % 4)*5120 + i*1280 + i_n*8}')
        return out
    def mf(ACC, ks, gram):
        out = []; x = XR + 4 * ks
        if gram:
            c = '0' if ks == 0 else f'v[{GR}:{GR+3}]'
            out.append(f'v_mfma_f32_16x16x32_bf16 v[{GR}:{GR+3}], v[{x}:{x+3}], v[{x}:{x+3}], {c}')
        for i_n in range(5):
            b = WB + (ks % 3) * 20 + i_n * 4; a = ACC + 4 * i_n
            c = '0' if ks == 0 else f'v[{a}:{a+3}]'
            out.append(f'v_mfma_f32_16x16x32_bf16 v[{a}:{a+3}], v[{b}:{b+3}], v[{x}:{x+3}], {c}')
        return out
    def gemm(seg, ACC, gram, hooks):
        for it in range(22):
            r = []
            if it < 20:
                if it % 4 == 0:
                    k('s_waitcnt lgkmcnt(0)' if it == 0 else 's_waitcnt lgkmcnt(10)')
                    ring.check_full(seg * 5 + it // 4)
                r = rd(seg, it)
                if it % 4 == 2 and it < 16: r = r + [ring.rd_full(seg * 5 + it // 4 + 1)]
            if it >= 2:
                younger = (10 if it - 1 < 20 else 0) + (1 if ((it - 1) % 4 == 2 and it - 1 < 16) else 0)
                k(f's_waitcnt lgkmcnt({younger})')
                for x in interleave(r, mf(ACC, it - 2, gram), 1.0): k(x)
            else:
                for x in r: k(x)
            if it in hooks: k(hooks[it])
    def load_wph():
        for i in range(5):
            for s in range(3):
                w = WPH + (i * 3 + s) * 4
                for h in range(2):
                    if s == 2 and h == 1: k(f'v_mov_b32 v{w+2}, 0\nv_mov_b32 v{w+3}, 0')
                    else: k(f'ds_read_b64_tr_b16 v[{w+2*h}:{w+2*h+1}], v11 offset:{(8*s + 4*h) * 40 + 8*i}')
    gemm(0, AK, True, {21: ring.set_free(R_K)})
    st()
    load_wph()
    k('v_and_b32 v12, 3, v2')
    k(f'v_cmp_eq_u32 vcc, 1, v12\nv_cndmask_b32 v13, v{GR}, v{GR+1}, vcc\nv_cmp_eq_u32 vcc, 2, v12\nv_cndmask_b32 v13, v13, v{GR+2}, vcc\nv_cmp_eq_u32 vcc, 3, v12\nv_cndmask_b32 v13, v13, v{GR+3}, vcc')
    k('v_lshrrev_b32 v12, 2, v2\nv_cmp_eq_u32 vcc, v12, v3\nv_cndmask_b32 v13, 0, v13, vcc')
    red_g(k, 13, 12)
    k(f'v_mov_b32 v12, {f2u(1e-5)}\nv_fmac_f32 v12, {f2u(1.0/640)}, v13\nv_rsq_f32 v14, v12')
    RS = 14
    feature_map(k, AK, RS, TMP + 8, WPH, AV, AK, WPH, PK, TMP)
    k(ring.rd_full(5))
    k('v_mov_b32 v22, 0\nbuffer_load_dword v23, v22, s[40:43], 0 offen sc1')
    st()
    gemm(1, AV, False, {14: ring.set_free(R_V3)})
    st()
    VB = TMP + 8
    k(f's_lshl_b32 s36, s35, 4\nv_add_u32 v4, s36, v2')
    k(f'v_mul_u32_u24 v12, 48, v4\nv_mul_u32_u24 v13, 3072, v3\nv_add3_u32 v12, v12, v13, 0\nv_add_u32 v12, {VV}, v12')
    k(f'v_mul_u32_u24 v5, 80, v4\nv_mul_u32_u24 v13, 5120, v3\nv_add3_u32 v5, v5, v13, 0\nv_add_u32 v5, {PHI}, v5')
    for i in range(10):
        k(f'v_pk_mul_f32 v[{AV + 2*i}:{AV + 2*i + 1}], v[{AV + 2*i}:{AV + 2*i + 1}], v[{RS}:{RS+1}] op_sel_hi:[1,0]')
    for i in range(10): k(f'v_cvt_pk_bf16_f32 v{VB + i}, v{AV + 2*i}, v{AV + 2*i + 1}')
    k(f'v_mov_b32 v{VB+10}, 0x00003f80\nv_mov_b32 v{VB+11}, 0')
    k(f'{ring.set_free(5)}\n{ring.rd_free(5)}\ns_waitcnt lgkmcnt(0)')
    ring.check(128 + 4 * 5, 0)
    for i in range(5): k(f'ds_write_b128 v5, v[{PK + 4*i}:{PK + 4*i + 3}] offset:{16*i}')
    for i in range(3): k(f'ds_write_b128 v12, v[{VB + 4*i}:{VB + 4*i + 3}] offset:{16*i}')
    k(ring.set_free(R_PHI))
    k('v_bfe_u32 v12, v0, 2, 2\nv_lshl_add_u32 v12, v3, 3, v12')
    k('v_and_b32 v13, 3, v0\nv_lshlrev_b32 v13, 3, v13')
    k(f's_mul_i32 s36, s35, 5120\ns_add_u32 s36, s36, {PHI}\ns_mul_i32 s37, s35, 3072\ns_add_u32 s37, s37, {VV}')
    k('v_mul_u32_u24 v20, 80, v12\nv_add3_u32 v20, v20, v13, s36\nv_mul_u32_u24 v12, 48, v12\nv_add3_u32 v12, v12, v13, s37')
    k(f's_lshl_b32 s36, s31, 5\ns_add_u32 s36, s36, s30\ns_mul_i32 s36, s36, {G1_STRIDE}\ns_mul_i32 s37, s35, 2240\ns_add_u32 s36, s36, s37')
    k(f's_mul_i32 s37, s35, 1680\ns_add_u32 s37, s37, {KVT}\nv_mul_u32_u24 v4, 80, v2\nv_lshl_add_u32 v4, v3, 3, v4\nv_add_u32 v4, s37, v4')
    k(f'v_mov_b32 v13, {KVT + 6912 - 1344}')
    k('v_cmp_gt_u32 vcc, 5, v2\nv_cndmask_b32 v5, v13, v4, vcc')
    k(f'v_cmp_gt_u32 vcc, 2, v3\nv_cndmask_b32 v7, v13, v5, vcc\nv_mov_b32 v13, {KVT + 6912}\nv_cndmask_b32 v6, v13, v4, vcc')
    k('v_mul_u32_u24 v21, 12, v0\nv_add_u32 v21, s37, v21')
    k('v_lshlrev_b32 v13, 4, v0\nv_cmp_gt_u32 vcc, 12, v0\nv_cndmask_b32 v248, v15, v13, vcc')
    k(f'{ring.rd_free(R_PHI)}\ns_waitcnt lgkmcnt(0)')
    ring.check(128 + 4 * R_PHI, 0)
    FA = WB; FBv = WB + 24
    for ks in range(2):
        for bb in range(2):
            for i in range(2):
                b = FBv + (ks * 2 + bb) * 4 + 2 * i
                k(f'ds_read_b64_tr_b16 v[{b}:{b+1}], v12 offset:{(ks*32 + i*4) * 48 + bb*32}')
        for a in range(3):
            for i in range(2):
                b = FA + (ks * 3 + a) * 4 + 2 * i
                k(f'ds_read_b64_tr_b16 v[{b}:{b+1}], v20 offset:{(ks*32 + i*4) * 80 + a*32}')
    KV = AK
    for ks in range(2):
        k(f's_waitcnt lgkmcnt({10 if ks == 0 else 0})')
        for a in range(3):
            for bb in range(2):
                d = KV + (a * 2 + bb) * 4; fa = FA + (ks*3 + a) * 4; fb = FBv + (ks*2 + bb) * 4
                c = '0' if ks == 0 else f'v[{d}:{d+3}]'
                k(f'v_mfma_f32_16x16x32_bf16 v[{d}:{d+3}], v[{fa}:{fa+3}], v[{fb}:{fb+3}], {c}')
    for a in range(3):
        for bb in range(2):
            d = KV + (a * 2 + bb) * 4; p = PK + (a * 2 + bb) * 2
            k(f'v_cvt_pk_bf16_f32 v{p}, v{d}, v{d+1}\nv_cvt_pk_bf16_f32 v{p+1}, v{d+2}, v{d+3}')
            va = {(0, 0): 4, (0, 1): 5, (1, 0): 6, (1, 1): 7}[(1 if a == 2 else 0, bb)]
            k(f'ds_write_b64 v{va}, v[{p}:{p+1}] offset:{bb*16*80 + a*32}')
    GB = TMP + 8
    for i in range(3):
        k(f'ds_read2_b32 v[{GB + 4*i}:{GB + 4*i + 1}], v21 offset0:{192*i} offset1:{192*i + 1}' if i < 1 else
          f'ds_read_b32 v{GB + 4*i}, v21 offset:{768*i}\nds_read_b32 v{GB + 4*i + 1}, v21 offset:{768*i + 4}')
        k(f'ds_read_b32 v{GB + 4*i + 2}, v21 offset:{768*i + 8}')
    k(ring.rd_full(10))
    Lpn = k.label('cpn'); Lgn = k.label('cgn')
    k(f's_mov_b32 s71, 100000\n{Lpn}:\ns_waitcnt vmcnt(0)\nv_readfirstlane_b32 s72, v23\ns_cmp_lg_u32 s72, 0\ns_cbranch_scc1 {Lgn}\ns_sleep 4')
    k(f'buffer_load_dword v23, v22, s[40:43], 0 offen sc1\ns_sub_u32 s71, s71, 1\ns_cmp_lg_u32 s71, 0\ns_cbranch_scc1 {Lpn}\ns_waitcnt vmcnt(0)\n{Lgn}:')
    for i in range(3): k(f'v_mov_b32 v{GB + 4*i + 3}, v23')
    k('s_waitcnt lgkmcnt(0)')
    for i in range(3):
        k(f'buffer_store_dwordx4 v[{GB + 4*i}:{GB + 4*i + 3}], v{13 if i < 2 else 248}, s[56:59], s36 offen offset:{1024*i} sc1')
    k(ring.set_free(R_ST))
    st()
    gemm(2, AK, False, {})
    load_wph()
    PQ = PK
    feature_map(k, AK, RS, TMP + 8, WPH, AV, AK, WPH, PQ, TMP)
    st()
    k(f'{ring.rd_free(R_ST)}')
    k(f's_lshl_b32 s36, s35, 4\nv_add_u32 v4, s36, v2\nv_mul_u32_u24 v5, 80, v4\nv_mul_u32_u24 v13, 5120, v3\nv_add3_u32 v5, v5, v13, 0\nv_add_u32 v5, {PHI}, v5')
    k('s_waitcnt lgkmcnt(0)')
    ring.check(128 + 4 * R_ST, 0)
    for i in range(5): k(f'ds_write_b128 v5, v[{PQ + 4*i}:{PQ + 4*i + 3}] offset:{16*i}')
    k(ring.set_free(6))
    k(f's_mul_i32 s36, s35, 5120\ns_add_u32 s36, s36, {PHI}\nv_mul_u32_u24 v5, 80, v2\nv_lshl_add_u32 v5, v3, 4, v5\nv_add_u32 v5, s36, v5')
    k('v_cmp_eq_u32 vcc, 0, v3\nv_cndmask_b32 v12, 0, -1, vcc')
    k(f's_mul_i32 s37, s35, 1680\ns_add_u32 s37, s37, {KVT}')
    k('v_mul_u32_u24 v6, 80, v2\nv_lshl_add_u32 v7, v3, 4, v6\nv_add_u32 v7, s37, v7\nv_add_u32 v6, s37, v6')
    k('v_and_b32 v8, 3, v2\nv_mul_u32_u24 v8, 80, v8\nv_lshl_add_u32 v9, v3, 4, v8\nv_add_u32 v9, s37, v9\nv_add_u32 v8, s37, v8')
    k('v_lshlrev_b32 v10, 4, v3\nv_add_u32 v10, s37, v10\nv_mov_b32 v11, s37')
    k('s_lshl_b32 s36, s30, 6\ns_mul_i32 s36, s36, 1280\ns_mul_i32 s37, s31, 160\ns_add_u32 s36, s36, s37\ns_mul_i32 s37, s35, 40\ns_add_u32 s36, s36, s37')
    k('v_mul_u32_u24 v20, 1280, v2\nv_lshl_add_u32 v21, v3, 3, v20\nv_cndmask_b32 v20, v15, v20, vcc')
    k(f'{ring.rd_free(6)}\ns_waitcnt lgkmcnt(0)')
    ring.check(128 + 4 * 6, 0)
    BF = 24
    for tt in range(4):
        for ks in range(2):
            b = BF + (tt * 2 + ks) * 4
            k(f'ds_read_b128 v[{b}:{b+3}], v5 offset:{tt * 1280 + ks * 64}')
    k('s_waitcnt lgkmcnt(0)')
    for tt in range(4):
        for j in range(4): k(f'v_and_b32 v{BF + (tt*2 + 1)*4 + j}, v12, v{BF + (tt*2 + 1)*4 + j}')
    Lw = k.label('wkv'); Lgo = k.label('gokv')
    k(f'{Lw}:\n{ring.rd_full(F_SEEN)}\ns_waitcnt lgkmcnt(0)\nv_readfirstlane_b32 s70, v19\ns_cmp_lg_u32 s70, 0\ns_cbranch_scc0 {Lw}')
    AF = 56
    k(f'ds_read_b128 v[{AF}:{AF+3}], v10 offset:1600\nds_read_b128 v[{AF+4}:{AF+7}], v11 offset:1664')
    k(f'ds_read_b128 v[{AF+8}:{AF+11}], v7\nds_read_b128 v[{AF+12}:{AF+15}], v6 offset:64')
    k(f'ds_read_b128 v[{AF+16}:{AF+19}], v9 offset:1280\nds_read_b128 v[{AF+20}:{AF+23}], v8 offset:1344')
    O = 80
    for a in range(3):
        k(f's_waitcnt lgkmcnt({4 - 2*a})')
        for ks in range(2):
            for tt in range(4):
                d = O + (a * 4 + tt) * 4; fa = AF + (a * 2 + ks) * 4; fb = BF + (tt * 2 + ks) * 4
                c = '0' if ks == 0 else f'v[{d}:{d+3}]'
                k(f'v_mfma_f32_16x16x32_bf16 v[{d}:{d+3}], v[{fa}:{fa+3}], v[{fb}:{fb+3}], {c}')
        if a == 1:
            for tt in range(4): k(f'v_add_f32 v{O + 4*tt}, {f2u(1e-6)}, v{O + 4*tt}')
            for tt in range(4): k(f'v_rcp_f32 v{O + 4*tt}, v{O + 4*tt}')
    for a in (1, 2):
        for tt in range(4):
            d = O + (a * 4 + tt) * 4; r = O + 4 * tt; p = 128 + (a * 4 + tt) * 2
            k(f'v_pk_mul_f32 v[{d}:{d+1}], v[{d}:{d+1}], v[{r}:{r+1}] op_sel_hi:[1,0]\nv_pk_mul_f32 v[{d+2}:{d+3}], v[{d+2}:{d+3}], v[{r}:{r+1}] op_sel_hi:[1,0]')
            k(f'v_cvt_pk_bf16_f32 v{p}, v{d}, v{d+1}\nv_cvt_pk_bf16_f32 v{p+1}, v{d+2}, v{d+3}')
            k(f's_add_u32 s37, s36, {tt * 16 * 1280}')
            if a == 1: k(f'buffer_store_dwordx2 v[{p}:{p+1}], v21, s[60:63], s37 offen')
            else: k(f'buffer_store_dwordx2 v[{p}:{p+1}], v20, s[60:63], s37 offen offset:32')
    st.dump(0, 35)
    k('s_endpgm')
    ring.emit_slow()
    k.fix_hazards_fast()
    errs = k.check_waits()
    if errs: print(name, 'WAIT ERRS', errs[:10])
    return k, (name, 256, 512, LDS1)
```

```python
import sys; sys.path.insert(0,'gen')
from gemm import *
from k1g import *
hdr = [l.rstrip('\n') for l in open('sequential_preLN__linear_kernel_hedgehog__glu_gated_geglu__prompt.s.ref') if l.startswith(';') and '@launch' not in l and 'Override' not in l and 'grid=ceil' not in l]
def mk(fn, o1={}, o2={}, o3={}, o4={}, order=None):
    ks = [k1_kernel('k1_kernel', False, o1), gemm_kernel('k2_kernel','k2', False, o2), gemm_kernel('k3_kernel','k3', False, o3), gemm_kernel('k4_kernel','k4', False, o4)]
    ls = [l for _,l in ks]
    if order: ls = [ls[i] for i in order]
    open(fn,'w').write(build_file(hdr, [k for k,_ in ks], ls))
mk('h_a.s')
mk('h_b.s', order=[0,0,1,2,3])
mk('h_c.s', order=[0,1,2,3,3])
mk('h_d.s', order=[0,1,2,2,3])
mk('h_e.s', {'prefetch': False})
mk('h_f.s', {'codepf': False})
```

```python
from common import *

def gemm_kernel(name, kind, stamps=False, opt=None):
    opt = opt or {}
    k = Kernel(name)
    if kind in ('k2', 'k4'):
        NWG, RB, XB, NL, TT, SL = 250, 82, 12, 1, 3, 7
        NST = 10 if kind == 'k2' else 27
        XP = 1280 if kind == 'k2' else 3456
        WP = 1280
        U = 2
    else:
        NWG, RB, XB, NL, TT, SL = 216, 256, 32, 2, 8, 3
        NST, XP, WP = 10, 1280, 3456
        U = 1
    SLOT = XB * 1024 + NL * 8192
    MISC = SL * SLOT
    FL = MISC + (12288 if kind != 'k3' else 4096 + 512)
    LDS = FL
    FL = 0
    nX = XB // 4
    NSP = opt.get('nsp', 10); NCSP = opt.get('ncs', 16) // 2
    nD = nX + 2 * NL
    N0 = opt.get('n0', 3 * nD if kind != 'k3' else nD + 6)
    NPER = opt.get('nper', 2 * nD if kind != 'k3' else nD + 4)
    HALF = 5 if NST == 10 else 14
    rot = opt.get('rot', 0)
    WPOL = opt.get('wpol', '')
    SPOL = opt.get('spol', '')

    Lend = k.label('end'); Lcomp = k.label('comp')
    k(f's_cmp_ge_u32 s2, {NWG}\ns_cbranch_scc1 {Lend}')
    st = Stamps(k, stamps, {'k2': 0, 'k3': 1, 'k4': 2}[kind]); st()
    k(f's_load_dwordx2 s[4:5], s[0:1], {WS}')
    if kind == 'k2':
        k(f's_load_dwordx2 s[6:7], s[0:1], {A_WO}\ns_load_dwordx2 s[8:9], s[0:1], {A_X}\ns_load_dwordx4 s[16:19], s[0:1], {B_WG}\ns_load_dwordx2 s[12:13], s[0:1], {B_WD}')
    elif kind == 'k3':
        k(f's_load_dwordx4 s[8:11], s[0:1], {B_WG}\ns_load_dwordx2 s[12:13], s[0:1], {B_WD}')
    else:
        k(f's_load_dwordx4 s[8:11], s[0:1], {B_WD}')
    k('s_and_b32 s20, s2, 7\ns_lshr_b32 s21, s2, 3')
    k('v_lshrrev_b32 v1, 6, v0\nv_and_b32 v0, 63, v0')
    if kind != 'k3':
        k('s_mul_i32 s22, s20, 31\ns_min_u32 s23, s20, 2\ns_add_u32 s22, s22, s23\ns_add_u32 s22, s22, s21')
        k('s_cmp_ge_u32 s22, 125\ns_cselect_b32 s23, 1, 0\ns_mul_i32 s24, s23, 125\ns_sub_u32 s22, s22, s24')
        sdiv(k, 30, 22, 5, 124)
        k('s_mul_i32 s24, s30, 5\ns_sub_u32 s24, s22, s24')
        k('s_mul_i32 s31, s23, 5\ns_add_u32 s31, s31, s24')
    else:
        k('s_lshr_b32 s23, s20, 2\ns_mul_i32 s22, s23, 27\ns_add_u32 s22, s22, s21')
        k('s_lshr_b32 s31, s22, 1\ns_and_b32 s24, s22, 1\ns_and_b32 s25, s20, 3\ns_lshl_b32 s30, s25, 1\ns_add_u32 s30, s30, s24')
    k('v_readfirstlane_b32 s35, v1')
    k(f's_mul_i32 s32, s23, {HALF}')
    k(f's_mul_i32 s33, s30, {RB}')
    k('s_lshl_b32 s34, s31, 7')
    if opt.get('samex'): k('s_mov_b32 s33, 0')
    if opt.get('samew'): k('s_and_b32 s34, s34, 128')
    k(f's_cmp_lt_u32 s35, 4\ns_cbranch_scc1 {Lcomp}')

    k('s_sub_u32 s35, s35, 4')
    if opt.get('lprio', 0): k(f's_setprio {opt["lprio"]}')
    k('v_lshrrev_b32 v1, 3, v0\nv_and_b32 v2, 7, v0\nv_lshrrev_b32 v3, 4, v0')
    k('v_lshrrev_b32 v22, 5, v0\nv_lshlrev_b32 v22, 3, v22\nv_and_b32 v23, 3, v1\nv_add_u32 v22, v22, v23')
    k('s_lshr_b32 s36, s35, 1\ns_lshl_b32 s36, s36, 5\ns_and_b32 s37, s35, 1\ns_lshl_b32 s37, s37, 2\ns_add_u32 s36, s36, s37\nv_add_u32 v22, s36, v22')
    k(f'v_mul_u32_u24 v22, {WP}, v22')
    k('v_lshlrev_b32 v23, 1, v3\nv_xor_b32 v23, v2, v23\nv_lshl_add_u32 v12, v23, 4, v22\nv_add_u32 v12, s34, v12')
    k(f'v_add_u32 v13, {16 * WP}, v12')
    k('v_add_u32 v3, s37, v3\nv_xor_b32 v3, v2, v3\nv_lshlrev_b32 v3, 4, v3')
    k('s_lshl_b32 s36, s35, 3\nv_add_u32 v20, s36, v1')
    k(f'v_add_u32 v23, s33, v20\nv_mul_u32_u24 v24, {XP}, v23\nv_add_u32 v4, v24, v3\nv_mov_b32 v21, {OOB}')
    for i in range(1, nX):
        k(f'v_add_u32 v{4 + i}, {32 * i * XP}, v4')
    if RB % 32:
        k(f'v_cmp_gt_u32 vcc, {RB - 32 * (nX - 1)}, v20\nv_cndmask_b32 v{4 + nX - 1}, v21, v{4 + nX - 1}, vcc\ns_or_b64 s[62:63], vcc, 1')
    k(f's_lshl_b32 s64, s35, 10\ns_lshl_b32 s65, s35, 11\ns_mov_b32 s66, s32')
    if rot == 1:
        k(f's_mul_i32 s66, s21, {opt.get("rotm", 3)}')
        sdiv(k, 67, 66, NST, 32 * opt.get('rotm', 3))
        k(f's_mul_i32 s67, s67, {NST}\ns_sub_u32 s66, s66, s67')
    if rot == 3:
        ra, rb = opt.get('rab', (1, 5) if NST == 27 else (1, 2) if kind == 'k2' else (1, 3))
        k(f's_mul_i32 s66, s30, {ra}\ns_mul_i32 s67, s31, {rb}\ns_add_u32 s66, s66, s67')
        sdiv(k, 67, 66, NST, 26 * (ra + rb))
        k(f's_mul_i32 s67, s67, {NST}\ns_sub_u32 s66, s66, s67')
    k('s_waitcnt lgkmcnt(0)')
    if kind == 'k2':
        srd(k, 44, 's6', 's7', D * 1280); srd_ws(k, 40, 4, WS_O, S * 1280); srd(k, 48, 's8', 's9', S * 1280)
    elif kind == 'k3':
        srd(k, 44, 's8', 's9', D * 3456); srd(k, 48, 's10', 's11', D * 3456); srd_ws(k, 40, 4, WS_H, S * 1280)
    else:
        srd(k, 44, 's8', 's9', F * 1280); srd_ws(k, 40, 4, WS_HH, S * 3456); srd_ws(k, 48, 4, WS_H, S * 1280)
    st()
    vm = []
    def instrs(s):
        base = (s % SL) * SLOT; out = []
        pre = f's_lshl_b32 s67, s66, 7\ns_mul_i32 s68, s66, {64 * WP}\ns_add_u32 s66, s66, 1\ns_cmp_eq_u32 s66, {NST}\ns_cselect_b32 s66, 0, s66\n'
        for ln in range(NL):
            for g1 in range(2):
                out.append(f's_add_u32 m0, s65, {base + XB * 1024 + ln * 8192 + g1 * 1024}\nbuffer_load_dwordx4 v{12 + g1}, s[{44 + 4*ln}:{47 + 4*ln}], s68 offen {WPOL} lds')
        for i in range(nX):
            t = f'buffer_load_dwordx4 v{4 + i}, s[40:43], s67 offen lds'
            if RB % 32 and i == nX - 1: t = f's_mov_b64 exec, s[62:63]\n{t}\ns_mov_b64 exec, -1'
            out.append(f's_add_u32 m0, s64, {base + i * 4096}\n{t}')
        out[0] = pre + out[0]
        return [(s, t) for t in out]
    queue = []
    for s in range(NST): queue += instrs(s)
    if kind in ('k2', 'k4'):
        pre = f'v_mul_u32_u24 v24, 1280, v23\nv_add3_u32 v14, v24, v3, s34\nv_add_u32 v15, {32 * 1280}, v14\nv_add_u32 v16, {64 * 1280}, v14\nv_cmp_gt_u32 vcc, {RB - 64}, v20\nv_cndmask_b32 v16, v21, v16, vcc\n'
        ex = [('x', (pre if i == 0 else '') + f's_add_u32 m0, s64, {MISC + i * 4096}\nbuffer_load_dwordx4 v{14 + i}, s[48:51], 0 offen lds') for i in range(3)]
        pos = (NST - 2) * nD
        queue = queue[:pos] + ex + queue[pos:]
    def cs_loads():
        k('s_lshr_b32 s36, s2, 2\ns_and_b32 s37, s2, 3\ns_lshl_b32 s37, s37, 2\ns_add_u32 s37, s37, s35')
        k('s_cmp_ge_u32 s36, 27\ns_cselect_b32 s72, s18, s16\ns_cselect_b32 s73, s19, s17\ns_cselect_b32 s38, 27, 0\ns_sub_u32 s38, s36, s38')
        k(f's_cmp_ge_u32 s2, 216\ns_cselect_b32 s74, 0, {D * 3456}\ns_mov_b32 s75, 0x20000')
        k(f's_mul_i32 s39, s37, {40 * 3456}\ns_lshl_b32 s38, s38, 7\ns_add_u32 s39, s39, s38')
        k('v_mul_u32_u24 v22, 3456, v1\nv_lshl_add_u32 v22, v2, 4, v22')
        for i in range(5):
            k(f'buffer_load_dwordx4 v[{32 + 4*i}:{35 + 4*i}], v22, s[72:75], s39 offen\ns_add_u32 s39, s39, {8 * 3456}'); vm.append('c')
        if opt.get('t_wd', 1):
            srd(k, 52, 's12', 's13', F * 1280)
            k(f's_lshl_b32 s38, s2, 2\ns_add_u32 s38, s38, s35\ns_mul_i32 s38, s38, {18 * 128}\nv_lshlrev_b32 v22, 7, v0\nv_cmp_gt_u32 vcc, 18, v0\nv_cndmask_b32 v22, v21, v22, vcc')
            k('buffer_load_dword v30, v22, s[52:55], s38 offen'); vm.append('t')
    def cs_finish():
        A = 56
        srd_ws(k, 56, 4, WS_CS, 16 * 3456 * 4)
        k(f's_waitcnt vmcnt({1 if opt.get("t_wd", 1) else 0})')
        for i in range(5):
            for j in range(4):
                if i == 0: k(f'v_lshlrev_b32 v{A + 2*j}, 16, v{32 + j}\nv_and_b32 v{A + 1 + 2*j}, 0xffff0000, v{32 + j}')
                else: k(f'v_lshlrev_b32 v22, 16, v{32 + 4*i + j}\nv_and_b32 v23, 0xffff0000, v{32 + 4*i + j}\nv_add_f32 v{A + 2*j}, v{A + 2*j}, v22\nv_add_f32 v{A + 1 + 2*j}, v{A + 1 + 2*j}, v23')
        for j in range(8): k(f'v_add_f32_dpp v{A+j}, v{A+j}, v{A+j} row_ror:8 row_mask:0xf bank_mask:0xf')
        for j in range(0, 8, 2): k(f'v_permlane32_swap_b32 v{A+j}, v{A+j+1}')
        for j in range(0, 8, 2): k(f'v_add_f32 v{A+j}, v{A+j}, v{A+j+1}')
        for j in (0, 4): k(f'v_permlane16_swap_b32 v{A+j}, v{A+j+2}')
        for j in (0, 4): k(f'v_add_f32 v{A+j}, v{A+j}, v{A+j+2}')
        k(f's_mul_i32 s37, s37, {3456 * 4}\ns_lshl_b32 s36, s36, 8\ns_add_u32 s37, s37, s36')
        k('v_lshrrev_b32 v22, 4, v0\nv_and_b32 v23, 1, v22\nv_lshlrev_b32 v23, 1, v23\nv_lshrrev_b32 v22, 1, v22\nv_add_u32 v22, v22, v23\nv_lshlrev_b32 v22, 2, v22\nv_lshl_add_u32 v22, v2, 5, v22')
        k('s_cmp_ge_u32 s2, 216\ns_cselect_b64 vcc, 0, -1\nv_cndmask_b32 v22, v21, v22, vcc')
        k(f'buffer_store_dword v{A}, v22, s[56:59], s37 offen\nbuffer_store_dword v{A+4}, v22, s[56:59], s37 offen offset:16')
    qi = [0]
    def issue_upto(maxstage, maxn):
        n = 0
        while qi[0] < len(queue) and n < maxn:
            tag, t = queue[qi[0]]
            if tag != 'x' and tag > maxstage: break
            k(t); vm.append(tag); qi[0] += 1; n += 1
            if qi[0] == len(queue):
                st()
                if kind == 'k2': cs_loads()
    def wait_for(tag):
        idx = max(i for i, t in enumerate(vm) if t == tag)
        assert sum(1 for t in vm if t == tag) == nD, (tag, vm)
        k(f's_waitcnt vmcnt({min(63, len(vm) - 1 - idx)})')
    issue_upto(SL - 1, N0)
    wait_for(0)
    st()
    k('s_barrier')
    for s in range(NST):
        issue_upto(s + SL - 1, NPER)
        if s < NST - 1:
            while sum(1 for t in vm if t == s + 1) < nD: issue_upto(s + 1, 1)
            wait_for(s + 1)
            k('s_barrier')
    if kind == 'k3' and opt.get('touch_wd', False):
        srd(k, 52, 's12', 's13', F * 1280)
        k('s_mul_i32 s38, s21, 320\ns_mul_i32 s39, s35, 80\ns_add_u32 s38, s38, s39\ns_mul_i32 s39, s23, 640')
        for i in range(2):
            k(f'v_add_u32 v14, {64 * i}, v0\nv_cmp_gt_u32 vcc, 80, v14\nv_add_u32 v14, s38, v14')
            vdiv(k, 15, 14, 5, 8640 + 256)
            k(f'v_mul_u32_u24 v16, 5, v15\nv_sub_u32 v16, v14, v16\nv_mul_u32_u24 v15, 1280, v15\nv_lshl_add_u32 v15, v16, 7, v15\nv_cndmask_b32 v15, v21, v15, vcc')
            k(f'buffer_load_dword v{34 + i}, v15, s[52:55], s39 offen')
    if kind == 'k2':
        k('s_barrier')
        cs_finish()
    st.dump(4, 35)
    k(f'{Lend}:\ns_endpgm')

    k(f'{Lcomp}:')
    st.n = 1
    if opt.get('prio', 0): k(f's_setprio {opt["prio"]}')
    k(f's_mov_b32 s75, {S}')
    k('s_lshr_b32 s36, s35, 1\ns_and_b32 s37, s35, 1')
    k('v_and_b32 v2, 15, v0\nv_lshrrev_b32 v3, 4, v0')
    k(f's_mul_i32 s38, s36, {TT * 2048}')
    k('v_lshrrev_b32 v6, 1, v2')
    k('v_xor_b32 v7, v3, v6\nv_lshlrev_b32 v7, 4, v7\nv_lshl_add_u32 v4, v2, 7, v7\nv_add_u32 v4, s38, v4')
    k('v_xor_b32 v5, 64, v4')
    k('v_bfe_u32 v8, v0, 2, 3\nv_bfe_u32 v9, v0, 3, 2\nv_lshrrev_b32 v10, 5, v0')
    k('s_lshl_b32 s39, s37, 1')
    k('v_xor_b32 v9, s39, v9')
    k('v_and_b32 v11, 3, v0\nv_lshlrev_b32 v11, 3, v11')
    k('v_lshl_add_u32 v11, v8, 7, v11\nv_lshl_add_u32 v11, v10, 10, v11')
    k(f'v_add_u32 v11, {XB * 1024}, v11')
    k('v_lshl_add_u32 v6, v9, 5, v11\nv_xor_b32 v7, 32, v6')
    NW = 2 * NL
    per_ks = TT + NW
    spg = 3 if kind != 'k3' else 1
    ngrp = -(-SL // spg)
    AB = 16
    for gi in range(ngrp):
        for a in range(4):
            k(f'v_add_u32 v{AB + 4*gi + a}, {gi * spg * SLOT}, v{4 + a}')
    FB = AB + 4 * ngrp
    setsz = U * per_ks * 4
    ACC = FB + 2 * setsz
    def xf(st_, u, tt): return FB + st_ * setsz + (u * per_ks + tt) * 4
    def wf(st_, u, j): return FB + st_ * setsz + (u * per_ks + TT + j) * 4
    def acc(tt, j): return ACC + (tt * NW + j) * 4
    def reads(st_, kss, stage):
        out = []
        if opt.get('noread'): return out
        slot = stage % SL; ab = AB + 4 * (slot // spg); so = (slot % spg) * SLOT
        for u, ks in enumerate(kss):
            for j in range(NW):
                ln, jj = j // 2, j % 2
                b = wf(st_, u, j)
                for i in range(2):
                    out.append(f'ds_read_b64_tr_b16 v[{b + 2*i}:{b + 2*i + 1}], v{ab + 2 + jj} offset:{so + ln * 8192 + ks * 4096 + i * 2048}')
            for tt in range(TT):
                b = xf(st_, u, tt)
                out.append(f'ds_read_b128 v[{b}:{b+3}], v{ab + ks} offset:{so + tt * 2048}')
        return out
    def mfmas(st_, zero=False):
        out = []
        if opt.get('nomfma'): return ['s_nop 0'] * 4
        if opt.get('fake32'):
            for h in range(2):
                for tt in range(TT):
                    a = acc(tt, 0); w = wf(st_, 0, (tt + h) % 4); x = xf(st_, 0, tt)
                    out.append(f'v_mfma_f32_32x32x16_bf16 v[{a}:{a+15}], v[{w}:{w+3}], v[{x}:{x+3}], v[{a}:{a+15}]')
            return out
        for u in range(U):
            for tt in range(TT):
                for j in range(NW):
                    a = acc(tt, j); w = wf(st_, u, j); x = xf(st_, u, tt)
                    c = '0' if (zero and u == 0) else f'v[{a}:{a+3}]'
                    out.append(f'v_mfma_f32_16x16x32_bf16 v[{a}:{a+3}], v[{w}:{w+3}], v[{x}:{x+3}], {c}')
        return out
    OP = 3456 if kind == 'k3' else 1280
    k('v_and_b32 v8, 1, v3\nv_lshlrev_b32 v8, 5, v8\nv_lshrrev_b32 v9, 1, v3\nv_lshl_add_u32 v8, v9, 4, v8')
    k(f's_lshl_b32 s39, s37, 6\ns_add_u32 s39, s39, s34\nv_add_u32 v8, s39, v8')
    k(f's_mul_i32 s38, s36, {TT * 16}\nv_add_u32 v9, s38, v2')
    k(f'v_add_u32 v10, s33, v9\nv_mul_u32_u24 v10, {OP}, v10\nv_add_u32 v10, v10, v8')
    k('s_waitcnt lgkmcnt(0)')
    if kind == 'k2':
        srd_ws(k, 52, 4, WS_H, S * 1280); srd_ws(k, 56, 4, WS_ST, 10 * S * 8)
    elif kind == 'k3':
        srd_ws(k, 52, 4, WS_HH, S * 3456)
    else:
        srd(k, 52, 's10', 's11', S * 1280)
    if kind in ('k2', 'k4'):
        k('v_lshrrev_b32 v11, 1, v2')
        k('v_lshrrev_b32 v8, 1, v3\ns_lshl_b32 s39, s37, 2\nv_add_u32 v8, s39, v8\nv_xor_b32 v8, v8, v11\nv_lshlrev_b32 v8, 4, v8')
        k('v_and_b32 v11, 1, v3\nv_lshl_add_u32 v8, v11, 3, v8\nv_lshl_add_u32 v8, v9, 7, v8')
        k(f'v_add_u32 v8, {MISC}, v8\nv_xor_b32 v11, 32, v8')
        k(f'v_mov_b32 v7, {OOB}\nv_mov_b32 v4, v10\nv_add_u32 v5, {16 * OP}, v10\nv_add_u32 v6, {32 * OP}, v10\nv_cmp_gt_u32 vcc, {RB - 32}, v9\nv_cndmask_b32 v6, v7, v6, vcc')
    else:
        k(f'v_lshlrev_b32 v8, 4, v3\ns_lshl_b32 s39, s37, 7\nv_add_u32 v8, s39, v8\nv_add_u32 v8, {MISC + 4096}, v8')
        k(f'v_lshlrev_b32 v11, 4, v9\nv_add_u32 v11, {MISC}, v11')
    if kind == 'k3':
        V = ACC
        srd_ws(k, 56, 4, WS_ST, NSP * S * 8); srd_ws(k, 60, 4, WS_CS, 2 * NCSP * 3456 * 4)
        k('s_lshl_b32 s72, s35, 6\ns_add_u32 s72, s72, s33\nv_add_u32 v12, s72, v0\nv_lshlrev_b32 v12, 3, v12')
        for p in range(NSP):
            k(f's_mov_b32 s73, {p * 16384}\nbuffer_load_dwordx2 v[{V + 2*p}:{V + 2*p + 1}], v12, s[56:59], s73 offen')
        k('v_and_b32 v13, 31, v0\ns_and_b32 s72, s35, 1\ns_lshl_b32 s72, s72, 5\ns_lshr_b32 s73, s35, 1\ns_mul_i32 s73, s73, 1728\ns_add_u32 s72, s72, s73\ns_lshl_b32 s73, s31, 6\ns_add_u32 s72, s72, s73')
        k(f'v_add_u32 v13, s72, v13\nv_lshlrev_b32 v13, 2, v13\nv_lshrrev_b32 v14, 5, v0\nv_mul_u32_u24 v14, {NCSP * 3456 * 4}, v14\nv_add_u32 v13, v13, v14')
        for p in range(NCSP):
            k(f's_mov_b32 s73, {p * 3456 * 4}\nbuffer_load_dword v{V + 24 + p}, v13, s[60:63], s73 offen')
        k(f's_waitcnt vmcnt({NCSP})')
        for p in range(1, NSP):
            k(f'v_pk_add_f32 v[{V}:{V+1}], v[{V}:{V+1}], v[{V + 2*p}:{V + 2*p + 1}]')
        c1 = -2.0 * math.sqrt(2.0 / math.pi) * math.log2(math.e); c2 = c1 * 0.044715
        k(f'v_mul_f32 v{V}, {f2u(-1.0/640)}, v{V}\nv_mul_f32 v{V+1}, {f2u(1.0/640)}, v{V+1}')
        k(f'v_fma_f32 v{V+1}, -v{V}, v{V}, v{V+1}\nv_max_f32 v{V+1}, 0, v{V+1}')
        k(f'v_add_f32 v{V+3}, {f2u(1e-5)}, v{V+1}\nv_rsq_f32 v{V+4}, v{V+3}')
        k(f'v_mul_f32 v{V+1}, {f2u(c1)}, v{V+4}\nv_mul_f32 v{V+2}, v{V+4}, v{V+4}\nv_mul_f32 v{V+2}, v{V+2}, v{V+4}\nv_mul_f32 v{V+2}, {f2u(c2)}, v{V+2}')
        k(f's_lshl_b32 s72, s35, 10\nv_lshlrev_b32 v12, 4, v0\nv_add_u32 v12, s72, v12\nv_add_u32 v12, {MISC}, v12')
        k(f'ds_write_b128 v12, v[{V}:{V+3}]\ns_waitcnt vmcnt(0)')
        for p in range(1, NCSP): k(f'v_add_f32 v{V+24}, v{V+24}, v{V + 24 + p}')
        k(f'v_mov_b32 v{V+25}, v{V+24}\nv_permlane32_swap_b32 v{V+24}, v{V+25}\nv_add_f32 v{V+24}, v{V+24}, v{V+25}')
        k(f'v_and_b32 v13, 31, v0\nv_lshlrev_b32 v13, 2, v13\ns_lshl_b32 s72, s35, 7\nv_add_u32 v13, s72, v13\nv_add_u32 v13, {MISC + 4096}, v13')
        k(f'ds_write_b32 v13, v{V+24}\ns_waitcnt lgkmcnt(0)')
    st()
    k('s_barrier')
    st()
    def late(lst, item, pos):
        i = int(len(lst) * pos); return lst[:i] + [item] + lst[i:]
    for s in range(NST):
        bar = 's_waitcnt lgkmcnt(0)' + ('\ns_barrier' if s < NST - 1 else '')
        if U == 1:
            if s == 0:
                for r in reads(0, [0], s): k(r)
            else:
                for x in interleave(reads(0, [0], s), mfmas(1), opt.get('f1', 0.6)): k(x)
            k('s_waitcnt lgkmcnt(0)')
            seq = interleave(reads(1, [1], s), mfmas(0, s == 0), opt.get('f2', 0.55))
            for x in late(seq, bar, opt.get('bpos', 0.85)): k(x)
        else:
            rd = reads(s % 2, [0, 1], s)
            if s == 0:
                for r in rd: k(r)
            else:
                for x in interleave(rd, mfmas(1 - s % 2, s == 1), opt.get('f3', 0.9)): k(x)
            k(bar)
    lastset = 1 if U == 1 else (NST - 1) % 2
    last = mfmas(lastset)
    T = FB + (1 - lastset) * setsz
    if kind in ('k2', 'k4'):
        R = T; P = T + 12; Q = T + 24
        rd = []
        for tt in range(TT):
            rd.append(f'ds_read_b64 v[{R + 4*tt}:{R + 4*tt + 1}], v8 offset:{tt * 2048}')
            rd.append(f'ds_read_b64 v[{R + 4*tt + 2}:{R + 4*tt + 3}], v11 offset:{tt * 2048}')
        for x in interleave(rd, last, 0.5): k(x)
        st()
        k('s_waitcnt lgkmcnt(0)')
        if kind == 'k2':
            k(f'v_mov_b32 v{Q+8}, 0x3f803f80')
            k(f's_lshl_b32 s38, s31, 14\ns_lshl_b32 s39, s33, 3\ns_add_u32 s38, s38, s39')
        for tt in range(TT):
            for j in range(2):
                a = acc(tt, j)
                for h in range(2):
                    r = R + 4*tt + 2*j + h; q = Q + 2 * h
                    k(f'v_lshlrev_b32 v{q}, 16, v{r}\nv_and_b32 v{q+1}, 0xffff0000, v{r}')
                    k(f'v_pk_add_f32 v[{q}:{q+1}], v[{q}:{q+1}], v[{a + 2*h}:{a + 2*h + 1}]')
                    k(f'v_cvt_pk_bf16_f32 v{P + 4*tt + 2*j + h}, v{q}, v{q+1}')
            if kind == 'k2':
                sm, sq = ACC + 2*tt, ACC + 2*tt + 1
                k(f'v_mov_b32 v{sm}, 0\nv_mov_b32 v{sq}, 0')
                for i in range(4):
                    k(f'v_dot2c_f32_bf16 v{sm}, v{P + 4*tt + i}, v{Q+8}\nv_dot2c_f32_bf16 v{sq}, v{P + 4*tt + i}, v{P + 4*tt + i}')
            k(f'v_permlane16_swap_b32 v{P + 4*tt}, v{P + 4*tt + 2}\nv_permlane16_swap_b32 v{P + 4*tt + 1}, v{P + 4*tt + 3}')
            k(f'buffer_store_dwordx4 v[{P + 4*tt}:{P + 4*tt + 3}], v{4 + tt}, s[52:55], 0 offen {SPOL}')
        if kind == 'k2':
            for tt in range(TT):
                sm, sq = ACC + 2*tt, ACC + 2*tt + 1
                k(f'v_permlane32_swap_b32 v{sm}, v{sq}\nv_add_f32 v{sm}, v{sm}, v{sq}')
            k(f'v_permlane16_swap_b32 v{ACC}, v{ACC+2}\nv_add_f32 v{ACC}, v{ACC}, v{ACC+2}')
            k(f'v_mov_b32 v{ACC+5}, v{ACC+4}\nv_permlane16_swap_b32 v{ACC+4}, v{ACC+5}\nv_add_f32 v{ACC+4}, v{ACC+4}, v{ACC+5}')
            k(f'v_mov_b32 v{ACC+1}, v{ACC+4}\ns_lshl_b32 s39, s35, 9\nv_lshlrev_b32 v{Q}, 3, v0\nv_add_u32 v{Q+1}, s39, v{Q}\nds_write_b64 v{Q+1}, v[{ACC}:{ACC+1}] offset:{FL}')
            k(f's_xor_b32 s39, s39, 512\ns_lshl_b32 s72, s37, 2\ns_add_u32 s39, s39, s72\nv_add_u32 v{Q+1}, s39, v{Q}')
            k(f's_cmp_eq_u32 s37, 0\ns_cselect_b64 vcc, -1, 0\nv_cndmask_b32 v{ACC}, v{ACC+1}, v{ACC}, vcc')
            k(f'v_and_b32 v{Q}, 1, v3\nv_lshlrev_b32 v{Q}, 4, v{Q}\nv_cndmask_b32 v{Q}, 32, v{Q}, vcc\nv_add_u32 v{Q}, v{Q}, v9')
            k(f'v_lshrrev_b32 v{Q+2}, 1, v3\nv_lshlrev_b32 v{Q+2}, 2, v{Q+2}\nv_lshl_add_u32 v{Q+3}, v{Q}, 3, v{Q+2}')
            k(f'v_cmp_gt_u32 vcc, {RB}, v{Q}\nv_add_u32 v{Q}, s33, v{Q}\nv_cmp_gt_u32 s[68:69], s75, v{Q}\ns_and_b64 vcc, vcc, s[68:69]')
            k(f'v_cndmask_b32 v{Q+3}, v7, v{Q+3}, vcc')
            k(f's_waitcnt lgkmcnt(0)\ns_barrier\nds_read_b32 v{Q+4}, v{Q+1} offset:{FL}\ns_waitcnt lgkmcnt(0)\nv_add_f32 v{ACC}, v{ACC}, v{Q+4}')
            k(f'buffer_store_dword v{ACC}, v{Q+3}, s[56:59], s38 offen')
    else:
        CS = T; STt = T + 16
        rd = []
        for j in range(4):
            ln, jj = j // 2, j % 2
            rd.append(f'ds_read_b128 v[{CS + 4*j}:{CS + 4*j + 3}], v8 offset:{ln * 256 + jj * 64}')
        for tt in range(TT):
            rd.append(f'ds_read_b128 v[{STt + 4*tt}:{STt + 4*tt + 3}], v11 offset:{tt * 256}')
        for x in interleave(rd, last, 0.75): k(x)
        st()
        k('s_waitcnt lgkmcnt(0)')
        Q = FB + 48
        for tt in range(TT):
            s0 = STt + 4*tt
            NM = f'v[{s0}:{s0+1}]'; BI = f'v[{s0+2}:{s0+3}]'
            P = Q + 32 + 4 * (tt % 2)
            prs = [(jj, h) for jj in range(2) for h in range(2)]
            def G(i): jj, h = prs[i]; b = acc(tt, jj) + 2*h; return f'v[{b}:{b+1}]'
            def Uu(i): jj, h = prs[i]; b = acc(tt, 2 + jj) + 2*h; return f'v[{b}:{b+1}]'
            def CG(i): jj, h = prs[i]; b = CS + 4*jj + 2*h; return f'v[{b}:{b+1}]'
            def CU(i): jj, h = prs[i]; b = CS + 8 + 4*jj + 2*h; return f'v[{b}:{b+1}]'
            def Z(i): b = Q + 2*i; return f'v[{b}:{b+1}]'
            for i in range(4): k(f'v_pk_fma_f32 {G(i)}, {CG(i)}, {NM}, {G(i)} op_sel_hi:[1,0,1]')
            for i in range(4): k(f'v_pk_mul_f32 {Z(i)}, {G(i)}, {G(i)}')
            for i in range(4): k(f'v_pk_fma_f32 {Z(i)}, {Z(i)}, {BI}, {NM} op_sel:[0,0,1] op_sel_hi:[1,0,1]')
            for i in range(4): k(f'v_pk_mul_f32 {Z(i)}, {Z(i)}, {G(i)}')
            for i in range(8): k(f'v_exp_f32 v{Q+i}, v{Q+i}')
            for i in range(4): k(f'v_pk_fma_f32 {Uu(i)}, {CU(i)}, {NM}, {Uu(i)} op_sel_hi:[1,0,1]')
            for i in range(4): k(f'v_pk_fma_f32 {Z(i)}, {Z(i)}, {BI}, {BI} op_sel:[0,1,1] op_sel_hi:[1,1,1]')
            for i in range(8): k(f'v_rcp_f32 v{Q+i}, v{Q+i}')
            for i in range(4): k(f'v_pk_mul_f32 {G(i)}, {G(i)}, {Uu(i)}')
            for i in range(4): k(f'v_pk_mul_f32 {G(i)}, {G(i)}, {Z(i)}')
            for i in range(4):
                jj, h = prs[i]; b = acc(tt, jj) + 2*h
                k(f'v_cvt_pk_bf16_f32 v{P + i}, v{b}, v{b+1}')
            k(f'v_permlane16_swap_b32 v{P}, v{P+2}\nv_permlane16_swap_b32 v{P+1}, v{P+3}')
            k(f's_mov_b32 s38, {tt * 16 * OP}')
            k(f'buffer_store_dwordx4 v[{P}:{P+3}], v10, s[52:55], s38 offen {SPOL}')
    st()
    st.dump(0, 35)
    k('s_endpgm')
    k.fix_hazards_fast()
    errs = k.check_waits()
    if errs: print(name, 'WAIT ERRS', errs[:10])
    return k, (name, NWG, 512, LDS)
```

```python
from common import *
from k1 import tile_map, LOG2E
WS_FLAG = 0x0F00000
SLOT = 20480; NSL = 7
XB = 3 * SLOT
MISC_W = NSL * SLOT
MISC_Z = MISC_W + 3200
FL = MISC_W + 4096
KVT = FL + 256
VV = KVT
LDS1 = VV + 12288 + 64
PHI = 4 * SLOT
SLOT_OF = [0, 1, 2, 3, 4, 5, 6, 0, 1, 2, 3, 5, 6, 0, 1]
OST = 2 * SLOT
F_X, F_SEEN, F_WO = 15, 16, 17
R_X, R_K, R_PHI, R_ST, R_PQ, R_O = 0, 1, 3, 4, 6, 7
R_DR = 2
R_Q = 5
WS_OF = WS_O
WS_F1 = WS_FLAG + 0x1000
WO_SLOT = [0, 1, 3, 5, 6]
R_S = lambda s: 8 + s
NCS = 8
G1_STRIDE = 9216
WS_G1 = 0x0300000
WS_G2 = 0x0580000

def feature_map(k, ACC, RS2, QB, WPH, P, EP, EM, OUTP, T):
    for i in range(10):
        k(f'v_pk_mul_f32 v[{ACC + 2*i}:{ACC + 2*i + 1}], v[{ACC + 2*i}:{ACC + 2*i + 1}], v[{RS2}:{RS2+1}] op_sel_hi:[1,0]')
    for i in range(10):
        k(f'v_cvt_pk_bf16_f32 v{QB + i}, v{ACC + 2*i}, v{ACC + 2*i + 1}')
    k(f'v_mov_b32 v{QB + 10}, 0\nv_mov_b32 v{QB + 11}, 0\ns_waitcnt lgkmcnt(0)')
    for i in range(5):
        for s in range(3):
            w = WPH + (i * 3 + s) * 4; p = P + 4 * i; b = QB + 4 * s
            c = '0' if s == 0 else f'v[{p}:{p+3}]'
            k(f'v_mfma_f32_16x16x32_bf16 v[{p}:{p+3}], v[{w}:{w+3}], v[{b}:{b+3}], {c}')
    mx, mn = T, T + 2
    k(f'v_max3_f32 v{mx}, v{P}, v{P+1}, v{P+2}\nv_min3_f32 v{mn}, v{P}, v{P+1}, v{P+2}')
    for i in range(3, 19, 2):
        k(f'v_max3_f32 v{mx}, v{mx}, v{P+i}, v{P+i+1}\nv_min3_f32 v{mn}, v{mn}, v{P+i}, v{P+i+1}')
    k(f'v_max_f32 v{mx}, v{mx}, v{P+19}\nv_min_f32 v{mn}, v{mn}, v{P+19}')
    k(f'v_mov_b32 v{T+4}, {f2u(LOG2E)}')
    k(f'v_mul_f32 v{mx}, v{T+4}, v{mx}\nv_mul_f32 v{mn}, v{T+4}, v{mn}')
    L = f'v[{T+4}:{T+5}]'
    for i in range(0, 20, 2):
        k(f'v_pk_fma_f32 v[{EP+i}:{EP+i+1}], v[{P+i}:{P+i+1}], {L}, v[{mx}:{mx+1}] op_sel_hi:[1,0,0] neg_lo:[0,0,1] neg_hi:[0,0,1]')
        k(f'v_pk_fma_f32 v[{EM+i}:{EM+i+1}], v[{P+i}:{P+i+1}], {L}, v[{mn}:{mn+1}] op_sel_hi:[1,0,0] neg_lo:[1,0,0] neg_hi:[1,0,0]')
    for i in range(20):
        k(f'v_exp_f32 v{EP+i}, v{EP+i}\nv_exp_f32 v{EM+i}, v{EM+i}')
    sp, sm = T, T + 2
    k(f'v_pk_add_f32 v[{sp}:{sp+1}], v[{EP}:{EP+1}], v[{EP+2}:{EP+3}]\nv_pk_add_f32 v[{sm}:{sm+1}], v[{EM}:{EM+1}], v[{EM+2}:{EM+3}]')
    for i in range(4, 20, 2):
        k(f'v_pk_add_f32 v[{sp}:{sp+1}], v[{sp}:{sp+1}], v[{EP+i}:{EP+i+1}]\nv_pk_add_f32 v[{sm}:{sm+1}], v[{sm}:{sm+1}], v[{EM+i}:{EM+i+1}]')
    k(f'v_add_f32 v{sp}, v{sp}, v{sp+1}\nv_add_f32 v{sm}, v{sm}, v{sm+1}')
    k(f'v_rcp_f32 v{sp}, v{sp}\nv_rcp_f32 v{sm}, v{sm}')
    for i in range(0, 20, 2):
        k(f'v_pk_mul_f32 v[{EP+i}:{EP+i+1}], v[{EP+i}:{EP+i+1}], v[{sp}:{sp+1}] op_sel_hi:[1,0]\nv_pk_mul_f32 v[{EM+i}:{EM+i+1}], v[{EM+i}:{EM+i+1}], v[{sm}:{sm+1}] op_sel_hi:[1,0]')
    for i in range(10):
        k(f'v_cvt_pk_bf16_f32 v{OUTP+i}, v{EP+2*i}, v{EP+2*i+1}\nv_cvt_pk_bf16_f32 v{OUTP+10+i}, v{EM+2*i}, v{EM+2*i+1}')

def k12_kernel(name, stamps=False, opt=None):
    opt = opt or {}
    CAP = opt.get('cap', 7); BO = opt.get('bo', 4)
    k = Kernel(name)
    Lend = k.label('end'); Lcomp = k.label('comp')
    k(f's_cmp_ge_u32 s2, 256\ns_cbranch_scc1 {Lend}')
    st = Stamps(k, stamps, 3); st()
    k(f's_load_dwordx4 s[8:11], s[0:1], {A_X}\ns_load_dwordx4 s[12:15], s[0:1], {A_WPHI}\ns_load_dwordx4 s[16:19], s[0:1], {B_WG}\ns_load_dwordx2 s[4:5], s[0:1], {WS}\ns_load_dwordx2 s[26:27], s[0:1], {B_WD}')
    k('v_lshrrev_b32 v1, 6, v0\nv_and_b32 v0, 63, v0')
    if opt.get('map81'):
        k('s_and_b32 s20, s2, 7\ns_lshr_b32 s21, s2, 3\ns_and_b32 s23, s21, 3\ns_lshl_b32 s30, s20, 2\ns_add_u32 s30, s30, s23\ns_lshr_b32 s31, s21, 2')
        k('s_mul_i32 s32, s23, 3\ns_add_u32 s32, s32, s31\ns_cmp_ge_u32 s32, 10\ns_cselect_b32 s24, 10, 0\ns_sub_u32 s32, s32, s24')
    else:
        tile_map(k)
    k('v_readfirstlane_b32 s35, v1')
    k(f's_cmp_lt_u32 s35, 4\ns_cbranch_scc1 {Lcomp}')

    k('s_sub_u32 s35, s35, 4')
    k('v_lshrrev_b32 v1, 3, v0\nv_and_b32 v2, 7, v0\nv_lshrrev_b32 v3, 4, v0')
    k('s_lshl_b32 s36, s30, 6\ns_lshl_b32 s37, s35, 4\ns_add_u32 s36, s36, s37\nv_add_u32 v20, s36, v1')
    k('v_mul_u32_u24 v20, 1280, v20\nv_xor_b32 v21, v2, v3\nv_lshl_add_u32 v4, v21, 4, v20')
    k(f'v_xor_b32 v21, 4, v21\nv_lshl_add_u32 v5, v21, 4, v20\nv_add_u32 v5, {8 * 1280}, v5')
    k('s_lshl_b32 s64, s35, 11\ns_mov_b32 s66, s32')
    k('s_waitcnt lgkmcnt(0)')
    srd(k, 40, 's8', 's9', S * 1280)
    st()
    vm = []
    for j in range(10):
        k('s_lshl_b32 s67, s66, 7')
        for h in range(2):
            k(f's_add_u32 m0, s64, {XB + j*8192 + h*1024}\nbuffer_load_dwordx4 v{4+h}, s[40:43], s67 offen lds'); vm.append(F_X)
        k('s_add_u32 s66, s66, 1\ns_cmp_eq_u32 s66, 10\ns_cselect_b32 s66, 0, s66')
    srd(k, 44, 's10', 's11', D * 3840)
    srd_ws(k, 56, 4, WS_FLAG, 1024)
    k('v_mov_b32 v19, 0\nbuffer_load_dword v80, v19, s[56:59], 0 offen sc1'); vm.append(F_X)
    for i in range(5):
        k(f'v_add_u32 v20, {64*i}, v0\nv_mul_u32_u24 v21, 6554, v20\nv_lshrrev_b32 v21, 16, v21')
        k('v_mul_u32_u24 v22, 10, v21\nv_sub_u32 v22, v20, v22')
        k('v_and_b32 v23, 0x13, v21\nv_bfe_u32 v24, v21, 2, 1\nv_lshl_or_b32 v23, v24, 3, v23\nv_bfe_u32 v24, v21, 3, 1\nv_lshl_or_b32 v23, v24, 2, v23')
        k(f'v_mul_u32_u24 v23, 3840, v23\nv_lshl_add_u32 v{6+i}, v22, 4, v23')
    ring = Ring(k, FL, 12, 13, 14, 15, 70)
    ring.setup(35, False)
    k('s_mul_i32 s65, s35, 5120\ns_mul_i32 s69, s31, 160')
    k('s_lshl_b32 s66, s32, 1\ns_add_u32 s66, s66, s35\ns_cmp_ge_u32 s66, 20\ns_cselect_b32 s67, 20, 0\ns_sub_u32 s66, s66, s67')
    srd(k, 48, 's12', 's13', 32 * 800)
    k(f's_lshl_b32 s36, s35, 6\nv_add_u32 v20, s36, v0\nv_cmp_gt_u32 vcc, 200, v20\nv_lshlrev_b32 v20, 4, v20\nv_mov_b32 v21, {OOB}\nv_cndmask_b32 v11, v21, v20, vcc')
    k('s_barrier')
    order = [F_X] + list(range(15)); pub = [0]
    cnt = {F_X: 21, **{s: 5 for s in range(15)}}; cnt[1] = 6
    def publish(final=False):
        while pub[0] < len(order):
            j = order[pub[0]]
            idxs = [i for i, t in enumerate(vm) if t == j]
            if len(idxs) < cnt[j]: return
            n = len(vm) - 1 - idxs[-1]
            cap = opt.get('capx', 3) if j == F_X else CAP
            if n < cap and not final: return
            k(f's_waitcnt vmcnt({n})\n{ring.set_full(j)}')
            if j in (F_X, 4): st()
            pub[0] += 1
    slow_extra = []
    def need_free(r, s):
        k(f'{ring.rd_free(r)}\ns_waitcnt lgkmcnt(0)')
        Ls = k.label('lslow'); Lb = k.label('lback'); Lp = k.label('lpoll')
        k(f'v_readfirstlane_b32 s70, v15\ns_cmp_eq_u32 s70, {ALL4}\ns_cbranch_scc0 {Ls}\n{Lb}:')
        pend = order[pub[0]:order.index(s)]
        txt = f'{Ls}:\n'
        for j in pend:
            idxs = [i for i, t in enumerate(vm) if t == j]
            txt += f's_waitcnt vmcnt({len(vm) - 1 - idxs[-1]})\n{ring.set_full(j)}\n'
        txt += f'{Lp}:\n{ring.rd_free(r)}\ns_waitcnt lgkmcnt(0)\nv_readfirstlane_b32 s70, v15\ns_cmp_eq_u32 s70, {ALL4}\ns_cbranch_scc1 {Lb}\ns_sleep 1\ns_branch {Lp}'
        slow_extra.append(txt)
    def touch(srd_, nl, per, dst):
        for i in range(-(-per // 64)):
            n = min(64, per - 64 * i)
            k(f's_mul_i32 s36, s2, {per * 128}\ns_add_u32 s36, s36, {64 * i * 128}')
            if n < 64: k(f'v_cmp_gt_u32 vcc, {n}, v0\nv_cndmask_b32 v22, v21, v20, vcc')
            k(f'buffer_load_dword v{dst + i}, v{20 if n == 64 else 22}, s[{srd_}:{srd_+3}], s36 offen')
    SEG = [1, 2, 0]
    NEED = {7: 0, 8: 1, 9: 2, 10: 3, 11: 5, 12: 6, 13: 7, 14: 8}
    for s in range(15):
        if s == 3: need_free(R_X, s)
        if s in NEED: need_free(R_S(NEED[s]), s)
        if s == opt.get('wa_at', 10) and opt.get('wa'):
            publish(True)
            k(f's_lshl_b32 s22, s2, 2\ns_add_u32 s22, s22, s35\ns_mul_i32 s23, s22, {7 * 128}\ns_mul_i32 s22, s22, {17 * 128}')
            k('v_lshlrev_b32 v22, 7, v0\nv_cmp_gt_u32 vcc, 7, v0\nv_cndmask_b32 v23, v21, v22, vcc\nv_cmp_gt_u32 vcc, 17, v0\nv_cndmask_b32 v22, v21, v22, vcc')
            for n, c in enumerate(opt['wa']):
                lo, nb = {'o': (14, D * 1280), 'g': (16, D * 3456), 'u': (18, D * 3456), 'd': (26, F * 1280)}[c]
                srd(k, 60, f's{lo}', f's{lo+1}', nb)
                k(f'buffer_load_dword v{84 + n}, v{23 if c == "o" else 22}, s[60:63], s{23 if c == "o" else 22} offen'); vm.append('t')
        k(f's_mul_i32 s67, s66, {32 * 3840}\ns_add_u32 s67, s67, s69\ns_add_u32 s67, s67, {SEG[s // 5] * 1280}')
        for i in range(5):
            k(f's_add_u32 m0, s65, {SLOT_OF[s] * SLOT + i*1024}\nbuffer_load_dwordx4 v{6+i}, s[44:47], s67 offen lds'); vm.append(s); publish()
        if s == 1:
            k(f's_mul_i32 s37, s31, 3200\ns_lshl_b32 s36, s35, 10\ns_add_u32 m0, s36, {MISC_W}')
            k('buffer_load_dwordx4 v11, s[48:51], s37 offen lds'); vm.append(1); publish()
        k('s_add_u32 s66, s66, 4\ns_cmp_ge_u32 s66, 20\ns_cselect_b32 s67, 20, 0\ns_sub_u32 s66, s66, s67')
    publish(True)
    st()
    Lcs = k.label('cs'); Ldone = k.label('ldone'); Ltch = k.label('tch'); Lh2 = k.label('h2')
    k(f's_sub_u32 s36, s35, 1\ns_cmp_lt_u32 s36, 2\ns_cbranch_scc1 {Lcs}')
    srd_ws(k, 52, 4, WS_G1, 256 * G1_STRIDE); srd_ws(k, 60, 4, WS_G2, 8 * G1_STRIDE)
    k(f's_cmp_eq_u32 s35, 0\ns_cselect_b32 s36, 0, 32\ns_add_u32 s36, s36, s30\ns_cmp_ge_u32 s36, 35\ns_cbranch_scc1 {Ltch}')
    Lps = k.label('ps'); Lgs = k.label('gs'); Lp1 = k.label('p1'); Ld1 = k.label('d1')
    k('v_add_u32 v80, 1, v80\ns_nop 0\nv_readfirstlane_b32 s72, v80')
    if opt.get('hprio', 3): k(f's_setprio {opt.get("hprio", 3)}')
    k(f's_lshl_b32 s37, s31, 5\ns_mul_i32 s37, s37, {G1_STRIDE}\ns_lshl_b32 s38, s36, 8\ns_add_u32 s37, s37, s38')
    k(f'v_and_b32 v20, 15, v0\nv_lshlrev_b32 v20, 4, v20\nv_mul_u32_u24 v22, {G1_STRIDE}, v3\nv_add_u32 v22, v22, v20')
    k('v_mov_b32 v4, 0x00003f80\nv_mov_b32 v5, 0x3f800000')
    k(f'{Lps}:\n{ring.rd_free(R_DR)}\ns_waitcnt lgkmcnt(0)\nv_readfirstlane_b32 s70, v15\ns_cmp_eq_u32 s70, {ALL4}\ns_cbranch_scc1 {Lgs}\ns_sleep 1\ns_branch {Lps}\n{Lgs}:')
    st()
    if opt.get('pre1', 0): k(f's_sleep {opt["pre1"]}')
    k(f's_mov_b32 s71, 100000\n{Lp1}:\ns_mov_b32 s38, s37')
    for i in range(8):
        k(f'buffer_load_dwordx4 v[{32 + 4*i}:{35 + 4*i}], v22, s[52:55], s38 offen sc1\ns_add_u32 s38, s38, {4 * G1_STRIDE}')
    k('s_waitcnt vmcnt(0)')
    k('v_xor_b32 v25, s72, v35')
    for i in range(1, 8): k(f'v_xor_b32 v26, s72, v{35 + 4*i}\nv_or_b32 v25, v25, v26')
    k(f'v_cmp_ne_u32 vcc, 0, v25\ns_cmp_eq_u64 vcc, 0\ns_cbranch_scc1 {Ld1}\ns_sleep {BO}\ns_sub_u32 s71, s71, 1\ns_cmp_lg_u32 s71, 0\ns_cbranch_scc1 {Lp1}\n{Ld1}:')
    st()
    for j in range(3):
        k(f'v_lshlrev_b32 v{64 + 2*j}, 16, v{32 + j}\nv_and_b32 v{65 + 2*j}, 0xffff0000, v{32 + j}')
    for i in range(1, 8):
        for j in range(3):
            k(f'v_lshlrev_b32 v25, 16, v{32 + 4*i + j}\nv_and_b32 v26, 0xffff0000, v{32 + 4*i + j}\nv_add_f32 v{64 + 2*j}, v{64 + 2*j}, v25\nv_add_f32 v{65 + 2*j}, v{65 + 2*j}, v26')
    for j in range(6): k(f'v_mov_b32 v{72 + j}, v{64 + j}')
    for j in range(6): k(f'v_permlane32_swap_b32 v{64 + j}, v{72 + j}')
    for j in range(6): k(f'v_add_f32 v{64 + j}, v{64 + j}, v{72 + j}')
    for j in range(6): k(f'v_mov_b32 v{72 + j}, v{64 + j}')
    for j in range(6): k(f'v_permlane16_swap_b32 v{64 + j}, v{72 + j}')
    for j in range(6): k(f'v_add_f32 v{64 + j}, v{64 + j}, v{72 + j}')
    for j in range(3): k(f'v_cvt_pk_bf16_f32 v{28 + j}, v{64 + 2*j}, v{65 + 2*j}')
    k(f'v_mov_b32 v31, s72\ns_mul_i32 s37, s31, {G1_STRIDE}\ns_lshl_b32 s38, s36, 8\ns_add_u32 s38, s38, s37')
    k('s_mov_b64 exec, 0xffff\nbuffer_store_dwordx4 v[28:31], v20, s[60:63], s38 offen sc1\ns_mov_b64 exec, -1')
    k(f's_cmp_eq_u32 s35, 0\ns_cbranch_scc1 {Lh2}')
    k(f'{Ltch}:')
    if opt.get('t_wd', 1):
        Lw = k.label('wseen3'); Lgo = k.label('tgo3')
        srd(k, 72, 's26', 's27', F * 1280)
        k('s_setprio 0\nv_lshlrev_b32 v20, 7, v0')
        k(f'{Lw}:\n{ring.rd_free(opt.get("wd_after", R_O))}\ns_waitcnt lgkmcnt(0)\nv_readfirstlane_b32 s70, v15\ns_cmp_eq_u32 s70, {ALL4}\ns_cbranch_scc1 {Lgo}\ns_sleep 4\ns_branch {Lw}\n{Lgo}:')
        touch(72, 17280, 68, 16)
    k(f's_branch {Ldone}')
    k(f'{Lh2}:')
    Lp2 = k.label('p2'); Ld2 = k.label('d2')
    k(f'v_lshlrev_b32 v20, 4, v0\nv_mul_u32_u24 v22, 12, v0\nv_add_u32 v22, {KVT}, v22\nv_add_u32 v23, 8192, v20\nv_cmp_gt_u32 vcc, 48, v0\nv_cndmask_b32 v23, v20, v23, vcc')
    st()
    k('s_waitcnt vmcnt(0)')
    if opt.get('pre2', 0): k(f's_sleep {opt["pre2"]}')
    k(f's_add_u32 s38, s37, 4096\ns_mov_b32 s71, 100000\n{Lp2}:')
    for i in range(8):
        k(f'buffer_load_dwordx4 v[{32 + 4*i}:{35 + 4*i}], v20, s[60:63], {"s37" if i < 4 else "s38"} offen offset:{(i % 4) * 1024} sc1')
    k('buffer_load_dwordx4 v[64:67], v23, s[60:63], s37 offen sc1')
    k('s_waitcnt vmcnt(0)')
    k('v_xor_b32 v25, s72, v35')
    for i in range(1, 9): k(f'v_xor_b32 v26, s72, v{35 + 4*i}\nv_or_b32 v25, v25, v26')
    k(f'v_cmp_ne_u32 vcc, 0, v25\ns_cmp_eq_u64 vcc, 0\ns_cbranch_scc1 {Ld2}\ns_sleep {BO}\ns_sub_u32 s71, s71, 1\ns_cmp_lg_u32 s71, 0\ns_cbranch_scc1 {Lp2}\n{Ld2}:')
    st()
    for i in range(9):
        k(f'ds_write_b32 v22, v{32 + 4*i} offset:{768*i}\nds_write_b32 v22, v{33 + 4*i} offset:{768*i + 4}\nds_write_b32 v22, v{34 + 4*i} offset:{768*i + 8}')
    k(ring.set_full(F_SEEN))
    k(f's_branch {Ldone}')
    k(f'{Lcs}:')
    srd(k, 52, 's14', 's15', D * 1280)
    for i in range(5):
        k(f'v_add_u32 v20, {64*i}, v0\nv_mul_u32_u24 v25, 6554, v20\nv_lshrrev_b32 v25, 16, v25')
        k('v_mul_u32_u24 v22, 10, v25\nv_sub_u32 v22, v20, v22')
        k('v_and_b32 v23, 0x13, v25\nv_bfe_u32 v24, v25, 2, 1\nv_lshl_or_b32 v23, v24, 3, v23\nv_bfe_u32 v24, v25, 3, 1\nv_lshl_or_b32 v23, v24, 2, v23')
        k(f'v_mul_u32_u24 v23, 1280, v23\nv_lshl_add_u32 v{6+i}, v22, 4, v23')
    k(f's_mul_i32 s65, s36, 5120\ns_mul_i32 s67, s36, {32 * 1280}\ns_add_u32 s67, s67, s69')
    Lw = k.label('wq'); Lgo = k.label('qgo')
    k(f'{Lw}:\n{ring.rd_free(R_Q)}\ns_waitcnt lgkmcnt(0)\nv_readfirstlane_b32 s70, v15\ns_cmp_eq_u32 s70, {ALL4}\ns_cbranch_scc1 {Lgo}\ns_sleep 2\ns_branch {Lw}\n{Lgo}:')
    for u2 in range(10):
        u = 2 * u2
        for i in range(5):
            k(f's_add_u32 m0, s65, {WO_SLOT[u // 4] * SLOT + (u % 4) * 5120 + i*1024}\nbuffer_load_dwordx4 v{6+i}, s[52:55], s67 offen lds')
        k(f's_add_u32 s67, s67, {64 * 1280}')
    k(f's_waitcnt vmcnt(0)\n{ring.set_full(F_WO)}')
    k(f's_cmp_ge_u32 s2, 216\ns_cbranch_scc1 {Ldone}')
    if opt.get('cs_after') is not None:
        Lw = k.label('wcs'); Lgo = k.label('csgo')
        k(f'{Lw}:\n{ring.rd_free(opt["cs_after"])}\ns_waitcnt lgkmcnt(0)\nv_readfirstlane_b32 s70, v15\ns_cmp_eq_u32 s70, {ALL4}\ns_cbranch_scc1 {Lgo}\ns_sleep 4\ns_branch {Lw}\n{Lgo}:')
    srd_ws(k, 60, 4, WS_CS, NCS * 3456 * 4)
    k('s_and_b32 s37, s2, 3\ns_lshl_b32 s37, s37, 1\ns_add_u32 s37, s37, s36\ns_lshr_b32 s36, s2, 2')
    k('s_cmp_ge_u32 s36, 27\ns_cselect_b32 s72, s18, s16\ns_cselect_b32 s73, s19, s17\ns_cselect_b32 s38, 27, 0\ns_sub_u32 s38, s36, s38')
    k(f's_mov_b32 s74, {D * 3456}\ns_mov_b32 s75, 0x20000')
    k(f's_mul_i32 s39, s37, {80 * 3456}\ns_lshl_b32 s38, s38, 7\ns_add_u32 s39, s39, s38')
    k('v_mul_u32_u24 v20, 3456, v1\nv_lshl_add_u32 v20, v2, 4, v20')
    for i in range(10):
        k(f'buffer_load_dwordx4 v[{24 + 4*i}:{27 + 4*i}], v20, s[72:75], s39 offen\ns_add_u32 s39, s39, {8 * 3456}')
    A = 64
    for i in range(10):
        k(f's_waitcnt vmcnt({9 - i})')
        for j in range(4):
            if i == 0: k(f'v_lshlrev_b32 v{A + 2*j}, 16, v{24 + j}\nv_and_b32 v{A + 1 + 2*j}, 0xffff0000, v{24 + j}')
            else: k(f'v_lshlrev_b32 v22, 16, v{24 + 4*i + j}\nv_and_b32 v23, 0xffff0000, v{24 + 4*i + j}\nv_add_f32 v{A + 2*j}, v{A + 2*j}, v22\nv_add_f32 v{A + 1 + 2*j}, v{A + 1 + 2*j}, v23')
    for j in range(8): k(f'v_add_f32_dpp v{A+j}, v{A+j}, v{A+j} row_ror:8 row_mask:0xf bank_mask:0xf')
    for j in range(0, 8, 2): k(f'v_permlane32_swap_b32 v{A+j}, v{A+j+1}')
    for j in range(0, 8, 2): k(f'v_add_f32 v{A+j}, v{A+j}, v{A+j+1}')
    for j in (0, 4): k(f'v_permlane16_swap_b32 v{A+j}, v{A+j+2}')
    for j in (0, 4): k(f'v_add_f32 v{A+j}, v{A+j}, v{A+j+2}')
    k(f's_mul_i32 s37, s37, {3456 * 4}\ns_lshl_b32 s36, s36, 8\ns_add_u32 s37, s37, s36')
    k('v_and_b32 v23, 1, v3\nv_lshlrev_b32 v23, 1, v23\nv_lshrrev_b32 v22, 1, v3\nv_add_u32 v22, v22, v23\nv_lshlrev_b32 v22, 2, v22\nv_lshl_add_u32 v22, v2, 5, v22')
    k(f'buffer_store_dword v{A}, v22, s[60:63], s37 offen\nbuffer_store_dword v{A+4}, v22, s[60:63], s37 offen offset:16')
    if stamps: k('s_endpgm')
    k(f'{Ldone}:')
    st.dump(4, 35)
    k(f'{Lend}:\ns_endpgm')
    for t in slow_extra: k(t)

    k(f'{Lcomp}:')
    st.n = 1
    XR = 24; WB = 104; WPH = 104; AK = 164; AV = 184; GR = 204; PK = 208; TMP = 228
    ring = Ring(k, FL, 16, 17, 18, 19, 70)
    ring.setup(35, True)
    k(f'v_mov_b32 v15, {OOB}')
    if opt.get('codepf', True):
        k('s_getpc_b64 s[76:77]\ncode_pc_anchor:\ns_sub_u32 s76, s76, code_pc_anchor-code_begin\ns_subb_u32 s77, s77, 0\ns_mov_b32 s78, code_end-code_begin\ns_mov_b32 s79, 0x20000')
        k('s_lshl_b32 s36, s21, 2\ns_add_u32 s36, s36, s35\ns_lshl_b32 s36, s36, 7')
        k('v_lshlrev_b32 v11, 14, v0\nv_cmp_gt_u32 vcc, 4, v0\nv_cndmask_b32 v11, v15, v11, vcc')
        k('buffer_load_dword v1, v11, s[76:79], s36 offen')
    k('v_and_b32 v2, 15, v0\nv_lshrrev_b32 v3, 4, v0')
    k('v_lshrrev_b32 v8, 1, v2\nv_xor_b32 v8, v3, v8\nv_lshlrev_b32 v8, 4, v8\nv_lshl_add_u32 v4, v2, 7, v8')
    k(f's_lshl_b32 s36, s35, 11\ns_add_u32 s36, s36, {XB}\nv_add_u32 v4, s36, v4\nv_xor_b32 v5, 64, v4')
    k(f'v_add_u32 v6, {5 * 8192}, v4\nv_add_u32 v7, {5 * 8192}, v5')
    k('v_lshrrev_b32 v11, 5, v0\nv_lshlrev_b32 v11, 4, v11\nv_bfe_u32 v12, v0, 4, 1\nv_lshl_add_u32 v11, v12, 2, v11\nv_bfe_u32 v12, v0, 2, 2\nv_add_u32 v11, v11, v12')
    k('v_mul_u32_u24 v11, 160, v11\nv_and_b32 v12, 3, v0\nv_mul_u32_u24 v12, 40, v12\nv_add_u32 v8, v11, v12')
    k(f'v_add_u32 v9, {3 * SLOT}, v8\nv_add_u32 v10, {6 * SLOT}, v8')
    k('v_and_b32 v11, 3, v0\nv_cmp_eq_u32 vcc, v11, v3')
    k(f'v_mul_u32_u24 v11, 800, v3\nv_bfe_u32 v12, v0, 2, 2\nv_mul_u32_u24 v12, 40, v12\nv_add3_u32 v11, v11, v12, 0\nv_add_u32 v11, {MISC_W}, v11')
    k(f'v_mov_b32 v12, {MISC_Z}\nv_cndmask_b32 v11, v12, v11, vcc')
    k('s_waitcnt lgkmcnt(0)')
    srd_ws(k, 44, 4, WS_FLAG, 0x1000 + 1024 * 128)
    k('v_mov_b32 v20, 0\nbuffer_load_dword v248, v20, s[44:47], 0 offen sc1')
    srd_ws(k, 56, 4, WS_G1, 256 * G1_STRIDE)
    srd_ws(k, 60, 4, WS_O, S * 1280)
    k('s_lshl_b32 s36, s35, 4\nv_add_u32 v22, s36, v2')
    k(f'v_mul_u32_u24 v249, 80, v22\nv_mul_u32_u24 v13, 5120, v3\nv_add3_u32 v249, v249, v13, 0\nv_add_u32 v249, {PHI}, v249')
    k(f'v_mul_u32_u24 v250, 48, v22\nv_mul_u32_u24 v13, 3072, v3\nv_add3_u32 v250, v250, v13, 0\nv_add_u32 v250, {VV}, v250')
    k('v_bfe_u32 v12, v0, 2, 2\nv_lshl_add_u32 v12, v3, 3, v12\nv_and_b32 v13, 3, v0\nv_lshlrev_b32 v13, 3, v13')
    k(f's_mul_i32 s38, s35, 5120\ns_add_u32 s38, s38, {PHI}\ns_mul_i32 s37, s35, 3072\ns_add_u32 s37, s37, {VV}')
    k('v_mul_u32_u24 v251, 80, v12\nv_add3_u32 v251, v251, v13, s38\nv_mul_u32_u24 v252, 48, v12\nv_add3_u32 v252, v252, v13, s37')
    k(f's_lshl_b32 s68, s31, 5\ns_add_u32 s68, s68, s30\ns_mul_i32 s68, s68, {G1_STRIDE}\ns_mul_i32 s37, s35, 2240\ns_add_u32 s68, s68, s37')
    k('v_mul_u32_u24 v21, 80, v2\nv_lshl_add_u32 v21, v3, 3, v21\nv_add_u32 v21, s38, v21')
    k('v_cmp_gt_u32 s[50:51], 5, v2\nv_cmp_gt_u32 s[52:53], 2, v3\ns_and_b64 s[54:55], s[50:51], s[52:53]')
    k('v_mul_u32_u24 v253, 12, v0\nv_add_u32 v253, s38, v253')
    k('v_lshlrev_b32 v254, 4, v0\nv_cmp_gt_u32 vcc, 12, v0\nv_cndmask_b32 v255, v15, v254, vcc')
    CT = opt.get('ct', None)
    if CT:
        srd(k, 64, 's14', 's15', D * 1280); srd(k, 40, 's16', 's17', D * 3456); srd(k, 72, 's18', 's19', D * 3456); srd(k, 8, 's26', 's27', F * 1280)
        k(f's_lshl_b32 s22, s2, 2\ns_add_u32 s22, s22, s35\ns_mul_i32 s23, s22, {7 * 128}\ns_mul_i32 s22, s22, {17 * 128}')
        k('v_lshlrev_b32 v22, 7, v0\nv_cmp_gt_u32 vcc, 7, v0\nv_cndmask_b32 v23, v15, v22, vcc\nv_cmp_gt_u32 vcc, 17, v0\nv_cndmask_b32 v22, v15, v22, vcc')
    TCH = {'o': 'buffer_load_dword v1, v23, s[64:67], s23 offen', 'g': 'buffer_load_dword v1, v22, s[40:43], s22 offen',
           'u': 'buffer_load_dword v1, v22, s[72:75], s22 offen', 'd': 'buffer_load_dword v1, v22, s[8:11], s22 offen'}
    def ct(pos):
        if CT:
            for c in CT.get(pos, ''): k(TCH[c])
    k('s_barrier')
    k(f'{ring.rd_full(F_X)}\ns_waitcnt lgkmcnt(0)')
    ring.check_full(F_X)
    st()
    k('s_waitcnt vmcnt(0)\nv_add_u32 v248, 1, v248')
    ct(0)
    for ks in range(20):
        ln, ksl = ks // 2, ks % 2
        a = (4 if ln < 5 else 6) + ksl
        k(f'ds_read_b128 v[{XR + 4*ks}:{XR + 4*ks + 3}], v{a} offset:{(ln % 5) * 8192}')
    T = TMP
    k(f'v_mov_b32 v20, 0x3f803f80')
    for i in range(4): k(f'v_mov_b32 v{T+i}, 0')
    for ks in range(20):
        if ks % 4 == 0: k(f's_waitcnt lgkmcnt({min(15, 16 - ks)})')
        for i in range(4): k(f'v_dot2c_f32_bf16 v{T + i}, v{XR + 4*ks + i}, v20')
        if ks == 16: k(ring.set_free(R_X))
    k(f'v_add_f32 v{T}, v{T}, v{T+1}\nv_add_f32 v{T+2}, v{T+2}, v{T+3}\nv_add_f32 v{T}, v{T}, v{T+2}')
    red_g(k, T, T + 1)
    k(f'v_mul_f32 v12, {f2u(-1.0/640)}, v{T}')
    for i in range(80):
        a = T + 4 + 2 * (i % 4)
        k(f'v_lshlrev_b32 v{a}, 16, v{XR+i}\nv_and_b32 v{a+1}, 0xffff0000, v{XR+i}\nv_pk_add_f32 v[{a}:{a+1}], v[{a}:{a+1}], v[12:13] op_sel_hi:[1,0]\nv_cvt_pk_bf16_f32 v{XR+i}, v{a}, v{a+1}')
        if i == 70: k(ring.rd_full(0))
    st()
    ct(1)
    def waddr(slot): return (8 + slot // 3, (slot % 3) * SLOT)
    def rd(seg, ks):
        stage = seg * 5 + ks // 4; a, off = waddr(SLOT_OF[stage]); out = []
        for i_n in range(5):
            b = WB + (ks % 3) * 20 + i_n * 4
            for i in range(2):
                out.append(f'ds_read_b64_tr_b16 v[{b+2*i}:{b+2*i+1}], v{a} offset:{off + (ks % 4)*5120 + i*1280 + i_n*8}')
        return out
    def mf(ACC, ks, gram):
        out = []; x = XR + 4 * ks
        if gram:
            c = '0' if ks == 0 else f'v[{GR}:{GR+3}]'
            out.append(f'v_mfma_f32_16x16x32_bf16 v[{GR}:{GR+3}], v[{x}:{x+3}], v[{x}:{x+3}], {c}')
        for i_n in range(5):
            b = WB + (ks % 3) * 20 + i_n * 4; a = ACC + 4 * i_n
            c = '0' if ks == 0 else f'v[{a}:{a+3}]'
            out.append(f'v_mfma_f32_16x16x32_bf16 v[{a}:{a+3}], v[{b}:{b+3}], v[{x}:{x+3}], {c}')
        return out
    def gemm(seg, ACC, gram, hooks):
        for it in range(22):
            r = []
            if it < 20:
                if it % 4 == 0:
                    k('s_waitcnt lgkmcnt(0)' if it == 0 else 's_waitcnt lgkmcnt(10)')
                    ring.check_full(seg * 5 + it // 4)
                r = rd(seg, it)
                if it % 4 == 2 and it < 16: r = r + [ring.rd_full(seg * 5 + it // 4 + 1)]
            if it >= 2:
                younger = (10 if it - 1 < 20 else 0) + (1 if ((it - 1) % 4 == 2 and it - 1 < 16) else 0)
                k(f's_waitcnt lgkmcnt({younger})')
                for x in interleave(r, mf(ACC, it - 2, gram), 1.0): k(x)
            else:
                for x in r: k(x)
            if it in hooks: k(hooks[it])
    def load_wph():
        for i in range(5):
            for s in range(3):
                w = WPH + (i * 3 + s) * 4
                for h in range(2):
                    if s == 2 and h == 1: k(f'v_mov_b32 v{w+2}, 0\nv_mov_b32 v{w+3}, 0')
                    else: k(f'ds_read_b64_tr_b16 v[{w+2*h}:{w+2*h+1}], v11 offset:{(8*s + 4*h) * 40 + 8*i}')
    gemm(0, AK, True, {5: ring.set_free(R_S(0)), 9: ring.set_free(R_S(1)), 13: ring.set_free(R_S(2)), 17: ring.set_free(R_S(3)), 21: ring.set_free(R_K)})
    st()
    ct(2)
    load_wph()
    k('v_and_b32 v12, 3, v2')
    k(f'v_cmp_eq_u32 vcc, 1, v12\nv_cndmask_b32 v13, v{GR}, v{GR+1}, vcc\nv_cmp_eq_u32 vcc, 2, v12\nv_cndmask_b32 v13, v13, v{GR+2}, vcc\nv_cmp_eq_u32 vcc, 3, v12\nv_cndmask_b32 v13, v13, v{GR+3}, vcc')
    k('v_lshrrev_b32 v12, 2, v2\nv_cmp_eq_u32 vcc, v12, v3\nv_cndmask_b32 v13, 0, v13, vcc')
    red_g(k, 13, 12)
    k(f'v_mov_b32 v12, {f2u(1e-5)}\nv_fmac_f32 v12, {f2u(1.0/640)}, v13\nv_rsq_f32 v14, v12')
    RS = 14
    feature_map(k, AK, RS, TMP + 8, WPH, AV, AK, WPH, PK, TMP)
    k(f'{ring.rd_free(R_K)}\ns_waitcnt lgkmcnt(0)')
    ring.check(128 + 4 * R_K, 0)
    for i in range(5): k(f'ds_write_b128 v249, v[{PK + 4*i}:{PK + 4*i + 3}] offset:{16*i}')
    k(ring.rd_full(5))
    VB = TMP + 8
    k(f'v_mov_b32 v{VB+10}, 0x00003f80\nv_mov_b32 v{VB+11}, 0')
    ct(3)
    GB = PK
    gemm(1, AV, False, {5: ring.set_free(R_S(5)), 9: ring.set_free(R_S(6)), 13: ring.set_free(R_S(7)), 17: ring.set_free(R_S(8))})
    st()
    for i in range(10):
        k(f'v_pk_mul_f32 v[{AV + 2*i}:{AV + 2*i + 1}], v[{AV + 2*i}:{AV + 2*i + 1}], v[{RS}:{RS+1}] op_sel_hi:[1,0]')
    for i in range(10): k(f'v_cvt_pk_bf16_f32 v{VB + i}, v{AV + 2*i}, v{AV + 2*i + 1}')
    for i in range(3): k(f'ds_write_b128 v250, v[{VB + 4*i}:{VB + 4*i + 3}] offset:{16*i}')
    k(ring.set_free(R_PHI))
    k(f'{ring.rd_free(R_PHI)}\ns_waitcnt lgkmcnt(0)')
    ring.check(128 + 4 * R_PHI, 0)
    FA = WB; FBv = WB + 24
    for ks in range(2):
        for bb in range(2):
            for i in range(2):
                b = FBv + (ks * 2 + bb) * 4 + 2 * i
                k(f'ds_read_b64_tr_b16 v[{b}:{b+1}], v252 offset:{(ks*32 + i*4) * 48 + bb*32}')
        for a in range(3):
            for i in range(2):
                b = FA + (ks * 3 + a) * 4 + 2 * i
                k(f'ds_read_b64_tr_b16 v[{b}:{b+1}], v251 offset:{(ks*32 + i*4) * 80 + a*32}')
    KV = AK
    for ks in range(2):
        k(f's_waitcnt lgkmcnt({10 if ks == 0 else 0})')
        for a in range(3):
            for bb in range(2):
                d = KV + (a * 2 + bb) * 4; fa = FA + (ks*3 + a) * 4; fb = FBv + (ks*2 + bb) * 4
                c = '0' if ks == 0 else f'v[{d}:{d+3}]'
                k(f'v_mfma_f32_16x16x32_bf16 v[{d}:{d+3}], v[{fa}:{fa+3}], v[{fb}:{fb+3}], {c}')
    for i in range(3): k(f'v_mov_b32 v{GB + 4*i + 3}, v248')
    for a, bb in [(0, 0), (1, 0), (0, 1), (1, 1), (2, 0), (2, 1)]:
        d = KV + (a * 2 + bb) * 4; p = VB + (a * 2 + bb) * 2
        k(f'v_cvt_pk_bf16_f32 v{p}, v{d}, v{d+1}\nv_cvt_pk_bf16_f32 v{p+1}, v{d+2}, v{d+3}')
    for a, bb in [(0, 0), (1, 0), (0, 1), (1, 1), (2, 0), (2, 1)]:
        p = VB + (a * 2 + bb) * 2
        if (a, bb) == (0, 1): k('s_mov_b64 exec, s[50:51]')
        if (a, bb) == (2, 0): k('s_mov_b64 exec, s[52:53]')
        if (a, bb) == (2, 1): k('s_mov_b64 exec, s[54:55]')
        k(f'ds_write_b64 v21, v[{p}:{p+1}] offset:{bb*16*80 + a*32}')
    k('s_mov_b64 exec, -1')
    for i in range(3):
        k(f'ds_read_b32 v{GB + 4*i}, v253 offset:{768*i}\nds_read_b32 v{GB + 4*i + 1}, v253 offset:{768*i + 4}\nds_read_b32 v{GB + 4*i + 2}, v253 offset:{768*i + 8}')
    k(ring.rd_full(10))
    for i in range(3):
        k(f's_waitcnt lgkmcnt({7 - 3*i})\nbuffer_store_dwordx4 v[{GB + 4*i}:{GB + 4*i + 3}], v{254 if i < 2 else 255}, s[56:59], s68 offen offset:{1024*i} sc1')
    k(ring.set_free(R_ST))
    st()
    gemm(2, AK, False, {opt.get('stk', 7): f's_waitcnt vmcnt(0)\n{ring.set_free(R_DR)}', 21: ring.set_free(R_Q)})
    load_wph()
    PQ = PK
    feature_map(k, AK, RS, TMP + 8, WPH, AV, AK, WPH, PQ, TMP)
    st()
    k(f'{ring.rd_free(R_ST)}')
    k('s_waitcnt lgkmcnt(0)')
    ring.check(128 + 4 * R_ST, 0)
    for i in range(5): k(f'ds_write_b128 v249, v[{PQ + 4*i}:{PQ + 4*i + 3}] offset:{16*i}')
    k(ring.set_free(R_PQ))
    k(f's_mul_i32 s36, s35, 5120\ns_add_u32 s36, s36, {PHI}\nv_mul_u32_u24 v5, 80, v2\nv_lshl_add_u32 v5, v3, 4, v5\nv_add_u32 v5, s36, v5')
    k('v_cmp_eq_u32 vcc, 0, v3\nv_cndmask_b32 v12, 0, -1, vcc')
    k(f's_mul_i32 s37, s35, 1680\ns_add_u32 s37, s37, {KVT}')
    k('v_mul_u32_u24 v160, 80, v2\nv_lshl_add_u32 v161, v3, 4, v160\nv_add_u32 v161, s37, v161\nv_add_u32 v160, s37, v160')
    k('v_and_b32 v162, 3, v2\nv_mul_u32_u24 v162, 80, v162\nv_lshl_add_u32 v163, v3, 4, v162\nv_add_u32 v163, s37, v163\nv_add_u32 v162, s37, v162')
    k('v_lshlrev_b32 v164, 4, v3\nv_add_u32 v164, s37, v164\nv_mov_b32 v165, s37')
    k(f's_mul_i32 s37, s35, 40\ns_add_u32 s37, s37, {OST}\nv_mul_u32_u24 v20, 160, v2\nv_add_u32 v20, s37, v20\nv_lshl_add_u32 v21, v3, 3, v20')
    k('s_lshl_b32 s36, s30, 6\ns_lshl_b32 s37, s35, 4\ns_add_u32 s36, s36, s37\ns_mul_i32 s36, s36, 1280\ns_mul_i32 s37, s31, 160\ns_add_u32 s36, s36, s37')
    k(f's_mul_i32 s37, s35, 2560\ns_add_u32 s37, s37, {OST}\nv_lshlrev_b32 v22, 4, v0\nv_add_u32 v22, s37, v22')
    for i in range(3):
        k(f'v_add_u32 v13, {64*i}, v0\nv_mul_u32_u24 v4, 6554, v13\nv_lshrrev_b32 v4, 16, v4\nv_mul_u32_u24 v23, 10, v4\nv_sub_u32 v23, v13, v23\nv_mul_u32_u24 v4, 1280, v4\nv_lshl_add_u32 v{250 + i}, v23, 4, v4')
    k('v_cmp_gt_u32 vcc, 32, v0\nv_cndmask_b32 v252, v15, v252, vcc')
    RX = 168
    srd(k, 40, 's8', 's9', S * 1280); srd_ws(k, 64, 4, WS_H, S * 1280); srd_ws(k, 72, 4, WS_ST, 8 * S * 8)
    k('v_mul_u32_u24 v4, 1280, v2\nv_mul_u32_u24 v13, 40, v3\nv_add_u32 v4, v4, v13')
    k(f'buffer_load_dwordx4 v[{RX}:{RX+3}], v4, s[40:43], s36 offen\nbuffer_load_dwordx4 v[{RX+4}:{RX+7}], v4, s[40:43], s36 offen offset:16\nbuffer_load_dwordx2 v[{RX+8}:{RX+9}], v4, s[40:43], s36 offen offset:32')
    k('s_lshl_b32 s38, s30, 2\ns_add_u32 s38, s38, s35\ns_mul_i32 s39, s38, 20480\ns_mul_i32 s48, s31, 2560\ns_add_u32 s48, s48, s39')
    k('s_lshl_b32 s49, s38, 10\ns_add_u32 s49, s49, 0x1000\ns_lshl_b32 s50, s31, 7\ns_add_u32 s50, s50, s49')
    k(f's_mul_i32 s37, s35, 2560\ns_add_u32 s37, s37, {OST}\nv_mul_u32_u24 v6, 160, v2\nv_lshl_add_u32 v7, v3, 4, v6\nv_add_u32 v7, s37, v7')
    k('v_add3_u32 v6, v6, v13, s37')
    k('v_cmp_gt_u32 vcc, 32, v0\nv_cndmask_b32 v255, v15, v254, vcc\nv_and_b32 v253, 7, v0\nv_lshlrev_b32 v253, 7, v253')
    k(f'{ring.rd_free(R_PQ)}\ns_waitcnt lgkmcnt(0)')
    ring.check(128 + 4 * R_PQ, 0)
    BF = 24
    for tt in range(4):
        for ks in range(2):
            b = BF + (tt * 2 + ks) * 4
            k(f'ds_read_b128 v[{b}:{b+3}], v5 offset:{tt * 1280 + ks * 64}')
    k('s_waitcnt lgkmcnt(0)')
    for tt in range(4):
        for j in range(4): k(f'v_and_b32 v{BF + (tt*2 + 1)*4 + j}, v12, v{BF + (tt*2 + 1)*4 + j}')
    Lw = k.label('wkv'); Lgo = k.label('gokv')
    k(f'{Lw}:\n{ring.rd_full(F_SEEN)}\ns_waitcnt lgkmcnt(0)\nv_readfirstlane_b32 s70, v19\ns_cmp_lg_u32 s70, 0\ns_cbranch_scc1 {Lgo}\ns_sleep 1\ns_branch {Lw}\n{Lgo}:')
    AF = 56
    k(f'ds_read_b128 v[{AF}:{AF+3}], v164 offset:1600\nds_read_b128 v[{AF+4}:{AF+7}], v165 offset:1664')
    k(f'ds_read_b128 v[{AF+8}:{AF+11}], v161\nds_read_b128 v[{AF+12}:{AF+15}], v160 offset:64')
    k(f'ds_read_b128 v[{AF+16}:{AF+19}], v163 offset:1280\nds_read_b128 v[{AF+20}:{AF+23}], v162 offset:1344')
    O = 80
    for a in range(3):
        k(f's_waitcnt lgkmcnt({4 - 2*a})')
        for ks in range(2):
            for tt in range(4):
                d = O + (a * 4 + tt) * 4; fa = AF + (a * 2 + ks) * 4; fb = BF + (tt * 2 + ks) * 4
                c = '0' if ks == 0 else f'v[{d}:{d+3}]'
                k(f'v_mfma_f32_16x16x32_bf16 v[{d}:{d+3}], v[{fa}:{fa+3}], v[{fb}:{fb+3}], {c}')
        if a == 1:
            for tt in range(4): k(f'v_add_f32 v{O + 4*tt}, {f2u(1e-6)}, v{O + 4*tt}')
            for tt in range(4): k(f'v_rcp_f32 v{O + 4*tt}, v{O + 4*tt}')
    st()
    for a in (1, 2):
        for tt in range(4):
            d = O + (a * 4 + tt) * 4; r = O + 4 * tt; p = 128 + (a * 4 + tt) * 2
            k(f'v_pk_mul_f32 v[{d}:{d+1}], v[{d}:{d+1}], v[{r}:{r+1}] op_sel_hi:[1,0]\nv_pk_mul_f32 v[{d+2}:{d+3}], v[{d+2}:{d+3}], v[{r}:{r+1}] op_sel_hi:[1,0]')
            k(f'v_cvt_pk_bf16_f32 v{p}, v{d}, v{d+1}\nv_cvt_pk_bf16_f32 v{p+1}, v{d+2}, v{d+3}')
            if a == 1: k(f'ds_write_b64 v21, v[{p}:{p+1}] offset:{tt * 2560}')
            else: k(f'ds_write_b64 v20, v[{p}:{p+1}] offset:{tt * 2560 + 32}')
    k(ring.set_free(R_O))
    k(f'{ring.rd_free(R_O)}\ns_waitcnt lgkmcnt(0)')
    ring.check(128 + 4 * R_O, 0)
    for i in range(3): k(f'ds_read_b128 v[{24 + 4*i}:{27 + 4*i}], v7 offset:{64*i}')
    for i in range(3): k(f's_waitcnt lgkmcnt({2 - i})\nbuffer_store_dwordx4 v[{24 + 4*i}:{27 + 4*i}], v{254 if i < 2 else 255}, s[60:63], s48 offen offset:{1024*i} sc1')
    NPRE = 3
    def rd2(ks):
        a, off = waddr(WO_SLOT[ks // 4]); out = []
        for i_n in range(5):
            b = WB + (ks % 3) * 20 + i_n * 4
            for i in range(2):
                out.append(f'ds_read_b64_tr_b16 v[{b+2*i}:{b+2*i+1}], v{a} offset:{off + (ks % 4)*5120 + i*1280 + i_n*8}')
        return out
    Lw = k.label('wwo'); Lgo = k.label('wogo')
    k(f'{Lw}:\n{ring.rd_full(F_WO)}\ns_waitcnt lgkmcnt(0)\nv_readfirstlane_b32 s70, v19\ns_cmp_eq_u32 s70, 0x10100\ns_cbranch_scc1 {Lgo}\ns_sleep 1\ns_branch {Lw}\n{Lgo}:')
    for r in rd2(0) + rd2(1): k(r)
    k('v_mov_b32 v20, 0\ns_waitcnt vmcnt(0)\ns_mov_b64 exec, 1\nbuffer_store_dword v248, v20, s[44:47], s50 offen sc1\ns_mov_b64 exec, -1\ns_waitcnt vmcnt(0)')
    Lp = k.label('pf1'); Ld = k.label('df1')
    k(f's_mov_b32 s71, 100000\n{Lp}:\nbuffer_load_dword v21, v253, s[44:47], s49 offen sc1\ns_waitcnt vmcnt(0)\nv_cmp_ne_u32 vcc, v21, v248\ns_cmp_eq_u64 vcc, 0')
    k(f's_cbranch_scc1 {Ld}\ns_sleep {BO}\ns_sub_u32 s71, s71, 1\ns_cmp_lg_u32 s71, 0\ns_cbranch_scc1 {Lp}\n{Ld}:')
    st()
    for ks in range(20):
        if ks % 4 == 0 and ks: k('s_add_u32 s39, s39, 4096')
        k(f'buffer_load_dwordx4 v[{XR + 4*ks}:{XR + 4*ks + 3}], v254, s[60:63], s39 offen offset:{(ks % 4) * 1024} sc1')
    Lnb = k.label('nobump')
    k(f's_or_b32 s37, s2, s35\ns_cmp_lg_u32 s37, 0\ns_cbranch_scc1 {Lnb}\ns_waitcnt vmcnt(0)\ns_mov_b64 exec, 1\nbuffer_store_dword v248, v20, s[44:47], 0 offen sc1\ns_mov_b64 exec, -1\ns_waitcnt vmcnt(0)\n{Lnb}:')
    AH = 184
    for ks in range(20):
        r = rd2(ks + 2) if ks + 2 < 20 else []
        k(f's_waitcnt vmcnt({19 - ks}) lgkmcnt({10 if ks + 1 < 20 else 0})')
        for x in interleave(r, mf(AH, ks, False), 1.0): k(x)
    st()
    HP = 208
    for i in range(10):
        q = TMP + 2 * (i % 4)
        k(f'v_lshlrev_b32 v{q}, 16, v{RX+i}\nv_and_b32 v{q+1}, 0xffff0000, v{RX+i}\nv_pk_add_f32 v[{q}:{q+1}], v[{q}:{q+1}], v[{AH+2*i}:{AH+2*i+1}]\nv_cvt_pk_bf16_f32 v{HP+i}, v{q}, v{q+1}')
    for i in range(5): k(f'ds_write_b64 v6, v[{HP+2*i}:{HP+2*i+1}] offset:{8*i}')
    for i in range(3): k(f'ds_read_b128 v[{24 + 4*i}:{27 + 4*i}], v22 offset:{1024*i}')
    k('v_mov_b32 v12, 0\nv_mov_b32 v13, 0\nv_mov_b32 v21, 0x3f803f80')
    for i in range(10): k(f'v_dot2c_f32_bf16 v12, v{HP+i}, v21\nv_dot2c_f32_bf16 v13, v{HP+i}, v{HP+i}')
    for i in range(3): k(f's_waitcnt lgkmcnt({2 - i})\nbuffer_store_dwordx4 v[{24 + 4*i}:{27 + 4*i}], v{250 + i}, s[64:67], s36 offen {opt.get("spol", "")}')
    k('v_permlane32_swap_b32 v12, v13\nv_add_f32 v12, v12, v13\nv_mov_b32 v13, v12\nv_permlane16_swap_b32 v12, v13\nv_add_f32 v12, v12, v13')
    k('s_lshl_b32 s37, s31, 14\ns_lshl_b32 s38, s38, 7\ns_add_u32 s37, s37, s38\nv_lshrrev_b32 v13, 1, v3\nv_lshlrev_b32 v13, 2, v13\nv_lshl_add_u32 v13, v2, 3, v13')
    k('buffer_store_dword v12, v13, s[72:75], s37 offen')
    st.dump(0, 35)
    k('s_endpgm')
    ring.emit_slow()
    k.fix_hazards_fast()
    errs = k.check_waits()
    if errs: print(name, 'WAIT ERRS', errs[:10])
    return k, (name, 256, 512, LDS1)
```

```python
import sys; sys.path.insert(0,'gen')
import common
from gemm import *
from k12 import *
hdr = [l.rstrip('\n') for l in open('sequential_preLN__linear_kernel_hedgehog__glu_gated_geglu__prompt.s.ref') if l.startswith(';') and '@launch' not in l and 'Override' not in l and 'grid=ceil' not in l]
def mk(fn, o1={}, o3={}, o4={}, order=None, shift=0):
    ks = [k12_kernel('k12_kernel', False, o1), gemm_kernel('k3_kernel','k3', False, {'nsp':8, 'ncs':8, **o3}), gemm_kernel('k4_kernel','k4', False, o4)]
    ls = [l for _,l in ks]
    if order: ls = [ls[i] for i in order]
    t = build_file(hdr, [k for k,_ in ks], ls)
    if shift:
        import re
        t = re.sub(r's_add_u32 (s\d+), s4, (\d+)', lambda m: f's_add_u32 {m.group(1)}, s4, {int(m.group(2)) + shift}', t)
    open(fn,'w').write(t)
sp = {'spol':'sc1'}
mk('h_a.s', {**sp, 'wa':'ogu'}, sp, sp)
mk('h_b.s', {**sp, 'wa':'ogu'}, sp, sp, shift=224<<20)
mk('h_c.s', {**sp, 'wa':'o'}, sp, sp)
mk('h_d.s', {'wa':'ogu'}, {}, {})
mk('h_e.s', {**sp, 'wa':'ogu'}, sp, sp, order=[0,0,1,2])
```

```python
from asmlib import *
from layout import *
import math, struct
f2u = lambda f: struct.unpack('<I', struct.pack('<f', f))[0]
OOB = 0x40000000

def srd(k, d, lo, hi, nbytes):
    k(f's_mov_b32 s{d}, {lo}\ns_mov_b32 s{d+1}, {hi}\ns_mov_b32 s{d+2}, {nbytes}\ns_mov_b32 s{d+3}, 0x20000')

def srd_ws(k, d, wslo, off, nbytes):
    k(f's_add_u32 s{d}, s{wslo}, {off}\ns_addc_u32 s{d+1}, s{wslo+1}, 0\ns_mov_b32 s{d+2}, {nbytes}\ns_mov_b32 s{d+3}, 0x20000')

def magic(c, maxv):
    for sh in range(4, 24):
        m = -(-(1 << sh) // c)
        if all((v * m) >> sh == v // c for v in range(maxv + 1)) and m * maxv < (1 << 31) and m < (1 << 24):
            return m, sh
    raise ValueError

def sdiv(k, dst, src, c, maxv):
    m, sh = magic(c, maxv)
    k(f's_mul_i32 s{dst}, s{src}, {m}\ns_lshr_b32 s{dst}, s{dst}, {sh}')

def vdiv(k, dst, src, c, maxv):
    m, sh = magic(c, maxv)
    k(f'v_mul_u32_u24 v{dst}, {m}, v{src}\nv_lshrrev_b32 v{dst}, {sh}, v{dst}')

def red_g(k, v, t):
    k(f'v_mov_b32 v{t}, v{v}\nv_permlane32_swap_b32 v{v}, v{t}\nv_add_f32 v{v}, v{v}, v{t}')
    k(f'v_mov_b32 v{t}, v{v}\nv_permlane16_swap_b32 v{v}, v{t}\nv_add_f32 v{v}, v{v}, v{t}')

def interleave(rd, mf, frac=0.75):
    out = []; nr = len(rd); nm = len(mf)
    per = max(1, -(-nr // max(1, int(nm * frac))))
    ri = 0
    for m in mf:
        out += rd[ri:ri + per]; ri += per
        out.append(m)
    return out + rd[ri:]

class Stamps:
    def __init__(self, k, on, slot): self.k = k; self.on = on; self.n = 0; self.slot = slot
    def __call__(self):
        if self.on:
            if self.on == 'dbg' and self.n == 0: self.k('s_memrealtime s[28:29]')
            self.k(f's_memtime s[{80 + 2*self.n}:{81 + 2*self.n}]'); self.n += 1
    def dump(self, role, wave_sgpr):
        if not self.on: return
        k = self.k
        if self.on == 'dbg':
            if role != 0: return
            L = k.label('nodbg')
            k('s_waitcnt lgkmcnt(0) vmcnt(0)')
            k(f's_memtime s[{80 + 2*self.n}:{81 + 2*self.n}]\ns_memrealtime s[24:25]\ns_load_dwordx2 s[22:23], s[0:1], {DBG}\ns_waitcnt lgkmcnt(0)'); n = self.n + 1
            k(f's_cmp_lg_u32 s2, 37\ns_cbranch_scc1 {L}\ns_cmp_lg_u32 s{wave_sgpr}, 0\ns_cbranch_scc1 {L}')
            srd(k, 76, 's22', 's23', 256)
            k('v_mov_b32 v1, 0')
            for i in range(1, n):
                k(f's_sub_u32 s3, s{80 + 2*i}, s80\nv_mov_b32 v2, s3\nbuffer_store_dword v2, v1, s[76:79], 0 offen offset:{4*(i-1)}')
            k(f's_sub_u32 s3, s24, s28\nv_mov_b32 v2, s3\nbuffer_store_dword v2, v1, s[76:79], 0 offen offset:60')
            k(f's_waitcnt vmcnt(0)\n{L}:')
            return
        k('s_waitcnt lgkmcnt(0) vmcnt(0)')
        k(f's_memtime s[{80 + 2*self.n}:{81 + 2*self.n}]\ns_waitcnt lgkmcnt(0)'); n = self.n + 1
        srd_ws(k, 76, 4, WS_DBG + self.slot * 0x100000, 0x100000)
        k(f's_lshl_b32 s3, s2, 3\ns_add_u32 s3, s3, s{wave_sgpr}\ns_add_u32 s3, s3, {role}\ns_lshl_b32 s3, s3, 7')
        k('v_mov_b32 v1, 0')
        for i in range(n):
            k(f'v_mov_b32 v2, s{80 + 2*i}\nbuffer_store_dword v2, v1, s[76:79], s3 offen offset:{4*i}')
        k('s_waitcnt vmcnt(0)')

ALL4 = 0x01010101
class Ring:
    def __init__(self, k, FL, vA, vB, vOne, vF, sT):
        self.k = k; self.FL = FL; self.vA = vA; self.vB = vB; self.vOne = vOne; self.vF = vF; self.sT = sT; self.slow = []
    def setup(self, wave_sgpr, zero):
        k = self.k
        k(f'v_mov_b32 v{self.vB}, {self.FL}\nv_add_u32 v{self.vA}, s{wave_sgpr}, v{self.vB}\nv_mov_b32 v{self.vOne}, 1')
        if zero:
            k(f'v_lshl_add_u32 v{self.vF}, v0, 2, v{self.vB}\nv_mov_b32 v{self.vOne}, 0\nds_write_b32 v{self.vF}, v{self.vOne}\ns_waitcnt lgkmcnt(0)\nv_mov_b32 v{self.vOne}, 1')
    def rd(self, off): return f'ds_read_b32 v{self.vF}, v{self.vB} offset:{off}'
    def rd_full(self, j): return self.rd(4 * j)
    def rd_free(self, j): return self.rd(128 + 4 * j)
    def set_full(self, j): return f'ds_write_b8 v{self.vA}, v{self.vOne} offset:{4 * j}'
    def set_free(self, j): return f'ds_write_b8 v{self.vA}, v{self.vOne} offset:{128 + 4 * j}'
    def check(self, off, sleep=1):
        k = self.k
        Ls = k.label('slow'); Lb = k.label('back')
        k(f'v_readfirstlane_b32 s{self.sT}, v{self.vF}\ns_cmp_eq_u32 s{self.sT}, {ALL4}\ns_cbranch_scc0 {Ls}\n{Lb}:')
        self.slow.append((Ls, Lb, off, sleep))
    def check_full(self, j): self.check(4 * j)
    def check_free(self, j): self.check(128 + 4 * j)
    def emit_slow(self):
        k = self.k
        for Ls, Lb, off, sleep in self.slow:
            k(f'{Ls}:\n{self.rd(off)}\ns_waitcnt lgkmcnt(0)\nv_readfirstlane_b32 s{self.sT}, v{self.vF}\ns_cmp_eq_u32 s{self.sT}, {ALL4}\ns_cbranch_scc1 {Lb}\ns_sleep {sleep}\ns_branch {Ls}')
        self.slow = []
```

```python
import sys; sys.path.insert(0,'gen')
import common
from gemm import *
from k12 import *
hdr = [l.rstrip('\n') for l in open('sequential_preLN__linear_kernel_hedgehog__glu_gated_geglu__prompt.s.ref') if l.startswith(';') and '@launch' not in l and 'Override' not in l and 'grid=ceil' not in l]
def mk(fn, o1={}, o3={}, o4={}, order=None, shift=0, st=False):
    ks = [k12_kernel('k12_kernel', st, o1), gemm_kernel('k3_kernel','k3', st, {'nsp':8, 'ncs':8, **o3}), gemm_kernel('k4_kernel','k4', st, o4)]
    ls = [l for _,l in ks]
    if order: ls = [ls[i] for i in order]
    t = build_file(hdr, [k for k,_ in ks], ls)
    if shift:
        import re
        t = re.sub(r's_add_u32 (s\d+), s4, (\d+)', lambda m: f's_add_u32 {m.group(1)}, s4, {int(m.group(2)) + shift}', t)
    open(fn,'w').write(t)
sp = {'spol':'sc1'}
mk('h_a.s', {**sp, 'wa':'ogu'}, sp, sp, st='dbg')
```

```python
from common import *
from k1 import tile_map, LOG2E
WS_FLAG = 0x0F00000
SLOT = 20480; NSL = 7
XB = 3 * SLOT
MISC_W = NSL * SLOT
MISC_Z = MISC_W + 3200
FL = MISC_W + 4096
KVT = FL + 256
VV = KVT
LDS1 = VV + 12288 + 64
PHI = 4 * SLOT
SLOT_OF = [0, 1, 2, 3, 4, 5, 6, 0, 1, 2, 3, 5, 6, 0, 1]
OST = 2 * SLOT
F_X, F_SEEN = 15, 16
R_X, R_K, R_PHI, R_ST, R_PQ, R_O = 0, 1, 3, 4, 6, 7
R_DR = 2
R_S = lambda s: 8 + s
NCS = 8
G1_STRIDE = 9216
WS_G1 = 0x0300000
WS_G2 = 0x0580000

def feature_map(k, ACC, RS2, QB, WPH, P, EP, EM, OUTP, T):
    for i in range(10):
        k(f'v_pk_mul_f32 v[{ACC + 2*i}:{ACC + 2*i + 1}], v[{ACC + 2*i}:{ACC + 2*i + 1}], v[{RS2}:{RS2+1}] op_sel_hi:[1,0]')
    for i in range(10):
        k(f'v_cvt_pk_bf16_f32 v{QB + i}, v{ACC + 2*i}, v{ACC + 2*i + 1}')
    k(f'v_mov_b32 v{QB + 10}, 0\nv_mov_b32 v{QB + 11}, 0\ns_waitcnt lgkmcnt(0)')
    for i in range(5):
        for s in range(3):
            w = WPH + (i * 3 + s) * 4; p = P + 4 * i; b = QB + 4 * s
            c = '0' if s == 0 else f'v[{p}:{p+3}]'
            k(f'v_mfma_f32_16x16x32_bf16 v[{p}:{p+3}], v[{w}:{w+3}], v[{b}:{b+3}], {c}')
    mx, mn = T, T + 2
    k(f'v_max3_f32 v{mx}, v{P}, v{P+1}, v{P+2}\nv_min3_f32 v{mn}, v{P}, v{P+1}, v{P+2}')
    for i in range(3, 19, 2):
        k(f'v_max3_f32 v{mx}, v{mx}, v{P+i}, v{P+i+1}\nv_min3_f32 v{mn}, v{mn}, v{P+i}, v{P+i+1}')
    k(f'v_max_f32 v{mx}, v{mx}, v{P+19}\nv_min_f32 v{mn}, v{mn}, v{P+19}')
    k(f'v_mov_b32 v{T+4}, {f2u(LOG2E)}')
    k(f'v_mul_f32 v{mx}, v{T+4}, v{mx}\nv_mul_f32 v{mn}, v{T+4}, v{mn}')
    L = f'v[{T+4}:{T+5}]'
    for i in range(0, 20, 2):
        k(f'v_pk_fma_f32 v[{EP+i}:{EP+i+1}], v[{P+i}:{P+i+1}], {L}, v[{mx}:{mx+1}] op_sel_hi:[1,0,0] neg_lo:[0,0,1] neg_hi:[0,0,1]')
        k(f'v_pk_fma_f32 v[{EM+i}:{EM+i+1}], v[{P+i}:{P+i+1}], {L}, v[{mn}:{mn+1}] op_sel_hi:[1,0,0] neg_lo:[1,0,0] neg_hi:[1,0,0]')
    for i in range(20):
        k(f'v_exp_f32 v{EP+i}, v{EP+i}\nv_exp_f32 v{EM+i}, v{EM+i}')
    sp, sm = T, T + 2
    k(f'v_pk_add_f32 v[{sp}:{sp+1}], v[{EP}:{EP+1}], v[{EP+2}:{EP+3}]\nv_pk_add_f32 v[{sm}:{sm+1}], v[{EM}:{EM+1}], v[{EM+2}:{EM+3}]')
    for i in range(4, 20, 2):
        k(f'v_pk_add_f32 v[{sp}:{sp+1}], v[{sp}:{sp+1}], v[{EP+i}:{EP+i+1}]\nv_pk_add_f32 v[{sm}:{sm+1}], v[{sm}:{sm+1}], v[{EM+i}:{EM+i+1}]')
    k(f'v_add_f32 v{sp}, v{sp}, v{sp+1}\nv_add_f32 v{sm}, v{sm}, v{sm+1}')
    k(f'v_rcp_f32 v{sp}, v{sp}\nv_rcp_f32 v{sm}, v{sm}')
    for i in range(0, 20, 2):
        k(f'v_pk_mul_f32 v[{EP+i}:{EP+i+1}], v[{EP+i}:{EP+i+1}], v[{sp}:{sp+1}] op_sel_hi:[1,0]\nv_pk_mul_f32 v[{EM+i}:{EM+i+1}], v[{EM+i}:{EM+i+1}], v[{sm}:{sm+1}] op_sel_hi:[1,0]')
    for i in range(10):
        k(f'v_cvt_pk_bf16_f32 v{OUTP+i}, v{EP+2*i}, v{EP+2*i+1}\nv_cvt_pk_bf16_f32 v{OUTP+10+i}, v{EM+2*i}, v{EM+2*i+1}')

def k1_kernel(name, stamps=False, opt=None):
    opt = opt or {}
    CAP = opt.get('cap', 7); BO = opt.get('bo', 4)
    k = Kernel(name)
    Lend = k.label('end'); Lcomp = k.label('comp')
    k(f's_cmp_ge_u32 s2, 256\ns_cbranch_scc1 {Lend}')
    st = Stamps(k, stamps, 3); st()
    k(f's_load_dwordx4 s[8:11], s[0:1], {A_X}\ns_load_dwordx4 s[12:15], s[0:1], {A_WPHI}\ns_load_dwordx4 s[16:19], s[0:1], {B_WG}\ns_load_dwordx2 s[4:5], s[0:1], {WS}\ns_load_dwordx2 s[26:27], s[0:1], {B_WD}')
    k('v_lshrrev_b32 v1, 6, v0\nv_and_b32 v0, 63, v0')
    if opt.get('map81'):
        k('s_and_b32 s20, s2, 7\ns_lshr_b32 s21, s2, 3\ns_and_b32 s23, s21, 3\ns_lshl_b32 s30, s20, 2\ns_add_u32 s30, s30, s23\ns_lshr_b32 s31, s21, 2')
        k('s_mul_i32 s32, s23, 3\ns_add_u32 s32, s32, s31\ns_cmp_ge_u32 s32, 10\ns_cselect_b32 s24, 10, 0\ns_sub_u32 s32, s32, s24')
    else:
        tile_map(k)
    k('v_readfirstlane_b32 s35, v1')
    k(f's_cmp_lt_u32 s35, 4\ns_cbranch_scc1 {Lcomp}')

    k('s_sub_u32 s35, s35, 4')
    k('v_lshrrev_b32 v1, 3, v0\nv_and_b32 v2, 7, v0\nv_lshrrev_b32 v3, 4, v0')
    k('s_lshl_b32 s36, s30, 6\ns_lshl_b32 s37, s35, 4\ns_add_u32 s36, s36, s37\nv_add_u32 v20, s36, v1')
    k('v_mul_u32_u24 v20, 1280, v20\nv_xor_b32 v21, v2, v3\nv_lshl_add_u32 v4, v21, 4, v20')
    k(f'v_xor_b32 v21, 4, v21\nv_lshl_add_u32 v5, v21, 4, v20\nv_add_u32 v5, {8 * 1280}, v5')
    k('s_lshl_b32 s64, s35, 11\ns_mov_b32 s66, s32')
    k('s_waitcnt lgkmcnt(0)')
    srd(k, 40, 's8', 's9', S * 1280)
    st()
    vm = []
    for j in range(10):
        k('s_lshl_b32 s67, s66, 7')
        for h in range(2):
            k(f's_add_u32 m0, s64, {XB + j*8192 + h*1024}\nbuffer_load_dwordx4 v{4+h}, s[40:43], s67 offen lds'); vm.append(F_X)
        k('s_add_u32 s66, s66, 1\ns_cmp_eq_u32 s66, 10\ns_cselect_b32 s66, 0, s66')
    srd(k, 44, 's10', 's11', D * 3840)
    srd_ws(k, 56, 4, WS_FLAG, 1024)
    k('s_lshl_b32 s39, s31, 7\nv_mov_b32 v19, 0\nbuffer_load_dword v80, v19, s[56:59], s39 offen sc1'); vm.append(F_X)
    for i in range(5):
        k(f'v_add_u32 v20, {64*i}, v0\nv_mul_u32_u24 v21, 6554, v20\nv_lshrrev_b32 v21, 16, v21')
        k('v_mul_u32_u24 v22, 10, v21\nv_sub_u32 v22, v20, v22')
        k('v_and_b32 v23, 0x13, v21\nv_bfe_u32 v24, v21, 2, 1\nv_lshl_or_b32 v23, v24, 3, v23\nv_bfe_u32 v24, v21, 3, 1\nv_lshl_or_b32 v23, v24, 2, v23')
        k(f'v_mul_u32_u24 v23, 3840, v23\nv_lshl_add_u32 v{6+i}, v22, 4, v23')
    ring = Ring(k, FL, 12, 13, 14, 15, 70)
    ring.setup(35, False)
    k('s_mul_i32 s65, s35, 5120\ns_mul_i32 s69, s31, 160')
    k('s_lshl_b32 s66, s32, 1\ns_add_u32 s66, s66, s35\ns_cmp_ge_u32 s66, 20\ns_cselect_b32 s67, 20, 0\ns_sub_u32 s66, s66, s67')
    srd(k, 48, 's12', 's13', 32 * 800)
    k(f's_lshl_b32 s36, s35, 6\nv_add_u32 v20, s36, v0\nv_cmp_gt_u32 vcc, 200, v20\nv_lshlrev_b32 v20, 4, v20\nv_mov_b32 v21, {OOB}\nv_cndmask_b32 v11, v21, v20, vcc')
    k('s_barrier')
    order = [F_X] + list(range(15)); pub = [0]
    cnt = {F_X: 21, **{s: 5 for s in range(15)}}; cnt[1] = 6
    def publish(final=False):
        while pub[0] < len(order):
            j = order[pub[0]]
            idxs = [i for i, t in enumerate(vm) if t == j]
            if len(idxs) < cnt[j]: return
            n = len(vm) - 1 - idxs[-1]
            cap = opt.get('capx', 3) if j == F_X else CAP
            if n < cap and not final: return
            k(f's_waitcnt vmcnt({n})\n{ring.set_full(j)}')
            if j in (F_X, 4): st()
            pub[0] += 1
    slow_extra = []
    def need_free(r, s):
        k(f'{ring.rd_free(r)}\ns_waitcnt lgkmcnt(0)')
        Ls = k.label('lslow'); Lb = k.label('lback'); Lp = k.label('lpoll')
        k(f'v_readfirstlane_b32 s70, v15\ns_cmp_eq_u32 s70, {ALL4}\ns_cbranch_scc0 {Ls}\n{Lb}:')
        pend = order[pub[0]:order.index(s)]
        txt = f'{Ls}:\n'
        for j in pend:
            idxs = [i for i, t in enumerate(vm) if t == j]
            txt += f's_waitcnt vmcnt({len(vm) - 1 - idxs[-1]})\n{ring.set_full(j)}\n'
        txt += f'{Lp}:\n{ring.rd_free(r)}\ns_waitcnt lgkmcnt(0)\nv_readfirstlane_b32 s70, v15\ns_cmp_eq_u32 s70, {ALL4}\ns_cbranch_scc1 {Lb}\ns_sleep 1\ns_branch {Lp}'
        slow_extra.append(txt)
    def touch(srd_, nl, per, dst):
        for i in range(-(-per // 64)):
            n = min(64, per - 64 * i)
            k(f's_mul_i32 s36, s2, {per * 128}\ns_add_u32 s36, s36, {64 * i * 128}')
            if n < 64: k(f'v_cmp_gt_u32 vcc, {n}, v0\nv_cndmask_b32 v22, v21, v20, vcc')
            k(f'buffer_load_dword v{dst + i}, v{20 if n == 64 else 22}, s[{srd_}:{srd_+3}], s36 offen')
    SEG = [1, 2, 0]
    NEED = {7: 0, 8: 1, 9: 2, 10: 3, 11: 5, 12: 6, 13: 7, 14: 8}
    for s in range(15):
        if s == 3: need_free(R_X, s)
        if s in NEED: need_free(R_S(NEED[s]), s)
        k(f's_mul_i32 s67, s66, {32 * 3840}\ns_add_u32 s67, s67, s69\ns_add_u32 s67, s67, {SEG[s // 5] * 1280}')
        for i in range(5):
            k(f's_add_u32 m0, s65, {SLOT_OF[s] * SLOT + i*1024}\nbuffer_load_dwordx4 v{6+i}, s[44:47], s67 offen lds'); vm.append(s); publish()
        if s == 1:
            k(f's_mul_i32 s37, s31, 3200\ns_lshl_b32 s36, s35, 10\ns_add_u32 m0, s36, {MISC_W}')
            k('buffer_load_dwordx4 v11, s[48:51], s37 offen lds'); vm.append(1); publish()
        k('s_add_u32 s66, s66, 4\ns_cmp_ge_u32 s66, 20\ns_cselect_b32 s67, 20, 0\ns_sub_u32 s66, s66, s67')
    publish(True)
    st()
    Lcs = k.label('cs'); Ldone = k.label('ldone'); Ltch = k.label('tch'); Lh2 = k.label('h2')
    k(f's_sub_u32 s36, s35, 1\ns_cmp_lt_u32 s36, 2\ns_cbranch_scc1 {Lcs}')
    srd_ws(k, 52, 4, WS_G1, 256 * G1_STRIDE); srd_ws(k, 60, 4, WS_G2, 8 * G1_STRIDE)
    k(f's_cmp_eq_u32 s35, 0\ns_cselect_b32 s36, 0, 32\ns_add_u32 s36, s36, s30\ns_cmp_ge_u32 s36, 35\ns_cbranch_scc1 {Ltch}')
    Lps = k.label('ps'); Lgs = k.label('gs'); Lp1 = k.label('p1'); Ld1 = k.label('d1')
    k('v_add_u32 v80, 1, v80\ns_nop 0\nv_readfirstlane_b32 s72, v80')
    if opt.get('hprio', 3): k(f's_setprio {opt.get("hprio", 3)}')
    k(f's_lshl_b32 s37, s31, 5\ns_mul_i32 s37, s37, {G1_STRIDE}\ns_lshl_b32 s38, s36, 8\ns_add_u32 s37, s37, s38')
    k(f'v_and_b32 v20, 15, v0\nv_lshlrev_b32 v20, 4, v20\nv_mul_u32_u24 v22, {G1_STRIDE}, v3\nv_add_u32 v22, v22, v20')
    k('v_mov_b32 v4, 0x00003f80\nv_mov_b32 v5, 0x3f800000')
    k(f'{Lps}:\n{ring.rd_free(R_DR)}\ns_waitcnt lgkmcnt(0)\nv_readfirstlane_b32 s70, v15\ns_cmp_eq_u32 s70, {ALL4}\ns_cbranch_scc1 {Lgs}\ns_sleep 1\ns_branch {Lps}\n{Lgs}:')
    st()
    if opt.get('pre1', 0): k(f's_sleep {opt["pre1"]}')
    k(f's_mov_b32 s71, 100000\n{Lp1}:\ns_mov_b32 s38, s37')
    for i in range(8):
        k(f'buffer_load_dwordx4 v[{32 + 4*i}:{35 + 4*i}], v22, s[52:55], s38 offen sc1\ns_add_u32 s38, s38, {4 * G1_STRIDE}')
    k('s_waitcnt vmcnt(0)')
    k('v_xor_b32 v25, s72, v35')
    for i in range(1, 8): k(f'v_xor_b32 v26, s72, v{35 + 4*i}\nv_or_b32 v25, v25, v26')
    k(f'v_cmp_ne_u32 vcc, 0, v25\ns_cmp_eq_u64 vcc, 0\ns_cbranch_scc1 {Ld1}\ns_sleep {BO}\ns_sub_u32 s71, s71, 1\ns_cmp_lg_u32 s71, 0\ns_cbranch_scc1 {Lp1}\n{Ld1}:')
    st()
    for j in range(3):
        k(f'v_lshlrev_b32 v{64 + 2*j}, 16, v{32 + j}\nv_and_b32 v{65 + 2*j}, 0xffff0000, v{32 + j}')
    for i in range(1, 8):
        for j in range(3):
            k(f'v_lshlrev_b32 v25, 16, v{32 + 4*i + j}\nv_and_b32 v26, 0xffff0000, v{32 + 4*i + j}\nv_add_f32 v{64 + 2*j}, v{64 + 2*j}, v25\nv_add_f32 v{65 + 2*j}, v{65 + 2*j}, v26')
    for j in range(6): k(f'v_mov_b32 v{72 + j}, v{64 + j}')
    for j in range(6): k(f'v_permlane32_swap_b32 v{64 + j}, v{72 + j}')
    for j in range(6): k(f'v_add_f32 v{64 + j}, v{64 + j}, v{72 + j}')
    for j in range(6): k(f'v_mov_b32 v{72 + j}, v{64 + j}')
    for j in range(6): k(f'v_permlane16_swap_b32 v{64 + j}, v{72 + j}')
    for j in range(6): k(f'v_add_f32 v{64 + j}, v{64 + j}, v{72 + j}')
    for j in range(3): k(f'v_cvt_pk_bf16_f32 v{28 + j}, v{64 + 2*j}, v{65 + 2*j}')
    k(f'v_mov_b32 v31, s72\ns_mul_i32 s37, s31, {G1_STRIDE}\ns_lshl_b32 s38, s36, 8\ns_add_u32 s38, s38, s37')
    k('s_mov_b64 exec, 0xffff\nbuffer_store_dwordx4 v[28:31], v20, s[60:63], s38 offen sc1\ns_mov_b64 exec, -1')
    k(f's_cmp_eq_u32 s35, 0\ns_cbranch_scc1 {Lh2}')
    k(f'{Ltch}:')
    if opt.get('t_wo', 1):
        srd(k, 72, 's14', 's15', D * 1280)
        k('v_lshlrev_b32 v20, 7, v0'); touch(72, 6400, 25, 16)
    k(f's_branch {Ldone}')
    k(f'{Lh2}:')
    Lp2 = k.label('p2'); Ld2 = k.label('d2')
    k(f'v_lshlrev_b32 v20, 4, v0\nv_mul_u32_u24 v22, 12, v0\nv_add_u32 v22, {KVT}, v22\nv_add_u32 v23, 8192, v20\nv_cmp_gt_u32 vcc, 48, v0\nv_cndmask_b32 v23, v20, v23, vcc')
    st()
    k('s_waitcnt vmcnt(0)')
    if opt.get('pre2', 0): k(f's_sleep {opt["pre2"]}')
    k(f's_add_u32 s38, s37, 4096\ns_mov_b32 s71, 100000\n{Lp2}:')
    for i in range(8):
        k(f'buffer_load_dwordx4 v[{32 + 4*i}:{35 + 4*i}], v20, s[60:63], {"s37" if i < 4 else "s38"} offen offset:{(i % 4) * 1024} sc1')
    k('buffer_load_dwordx4 v[64:67], v23, s[60:63], s37 offen sc1')
    k('s_waitcnt vmcnt(0)')
    k('v_xor_b32 v25, s72, v35')
    for i in range(1, 9): k(f'v_xor_b32 v26, s72, v{35 + 4*i}\nv_or_b32 v25, v25, v26')
    k(f'v_cmp_ne_u32 vcc, 0, v25\ns_cmp_eq_u64 vcc, 0\ns_cbranch_scc1 {Ld2}\ns_sleep {BO}\ns_sub_u32 s71, s71, 1\ns_cmp_lg_u32 s71, 0\ns_cbranch_scc1 {Lp2}\n{Ld2}:')
    st()
    for i in range(9):
        k(f'ds_write_b32 v22, v{32 + 4*i} offset:{768*i}\nds_write_b32 v22, v{33 + 4*i} offset:{768*i + 4}\nds_write_b32 v22, v{34 + 4*i} offset:{768*i + 8}')
    k(ring.set_full(F_SEEN))
    k(f's_cmp_lg_u32 s30, 0\ns_cbranch_scc1 {Ldone}\ns_lshl_b32 s39, s31, 7\ns_mov_b64 exec, 1\nbuffer_store_dword v80, v19, s[56:59], s39 offen sc1\ns_mov_b64 exec, -1')
    k(f's_branch {Ldone}')
    k(f'{Lcs}:')
    if opt.get('t_gu', 1):
        Lw = k.label('wseen'); Lgo = k.label('tgo')
        k('s_cmp_eq_u32 s35, 1\ns_cselect_b32 s72, s16, s18\ns_cselect_b32 s73, s17, s19')
        k(f's_mov_b32 s74, {D * 3456}\ns_mov_b32 s75, 0x20000\nv_lshlrev_b32 v20, 7, v0')
        if opt.get('t_gu', 1) == 1:
            k(f'{Lw}:\n{ring.rd_full(F_SEEN)}\ns_waitcnt lgkmcnt(0)\nv_readfirstlane_b32 s70, v15\ns_cmp_lg_u32 s70, 0\ns_cbranch_scc1 {Lgo}\ns_sleep 4\ns_branch {Lw}\n{Lgo}:')
        touch(72, 17280, 68, 16)
        if opt.get('t_wd', 0):
            srd(k, 60, 's26', 's27', F * 1280)
            k(f's_sub_u32 s37, s35, 1\ns_mul_i32 s37, s37, {8640 * 128}\nv_add_u32 v20, s37, v20')
            touch(60, 8640, 34, 24)
    if stamps: k('s_endpgm')
    k(f'{Ldone}:')
    st.dump(4, 35)
    k(f'{Lend}:\ns_endpgm')
    for t in slow_extra: k(t)

    k(f'{Lcomp}:')
    st.n = 1
    XR = 24; WB = 104; WPH = 104; AK = 164; AV = 184; GR = 204; PK = 208; TMP = 228
    ring = Ring(k, FL, 16, 17, 18, 19, 70)
    ring.setup(35, True)
    k(f'v_mov_b32 v15, {OOB}')
    if opt.get('codepf', True):
        k('s_getpc_b64 s[76:77]\ncode_pc_anchor:\ns_sub_u32 s76, s76, code_pc_anchor-code_begin\ns_subb_u32 s77, s77, 0\ns_mov_b32 s78, code_end-code_begin\ns_mov_b32 s79, 0x20000')
        k('s_lshl_b32 s36, s21, 2\ns_add_u32 s36, s36, s35\ns_lshl_b32 s36, s36, 7')
        k('v_lshlrev_b32 v11, 14, v0\nv_cmp_gt_u32 vcc, 4, v0\nv_cndmask_b32 v11, v15, v11, vcc')
        k('buffer_load_dword v1, v11, s[76:79], s36 offen')
    k('v_and_b32 v2, 15, v0\nv_lshrrev_b32 v3, 4, v0')
    k('v_lshrrev_b32 v8, 1, v2\nv_xor_b32 v8, v3, v8\nv_lshlrev_b32 v8, 4, v8\nv_lshl_add_u32 v4, v2, 7, v8')
    k(f's_lshl_b32 s36, s35, 11\ns_add_u32 s36, s36, {XB}\nv_add_u32 v4, s36, v4\nv_xor_b32 v5, 64, v4')
    k(f'v_add_u32 v6, {5 * 8192}, v4\nv_add_u32 v7, {5 * 8192}, v5')
    k('v_lshrrev_b32 v11, 5, v0\nv_lshlrev_b32 v11, 4, v11\nv_bfe_u32 v12, v0, 4, 1\nv_lshl_add_u32 v11, v12, 2, v11\nv_bfe_u32 v12, v0, 2, 2\nv_add_u32 v11, v11, v12')
    k('v_mul_u32_u24 v11, 160, v11\nv_and_b32 v12, 3, v0\nv_mul_u32_u24 v12, 40, v12\nv_add_u32 v8, v11, v12')
    k(f'v_add_u32 v9, {3 * SLOT}, v8\nv_add_u32 v10, {6 * SLOT}, v8')
    k('v_and_b32 v11, 3, v0\nv_cmp_eq_u32 vcc, v11, v3')
    k(f'v_mul_u32_u24 v11, 800, v3\nv_bfe_u32 v12, v0, 2, 2\nv_mul_u32_u24 v12, 40, v12\nv_add3_u32 v11, v11, v12, 0\nv_add_u32 v11, {MISC_W}, v11')
    k(f'v_mov_b32 v12, {MISC_Z}\nv_cndmask_b32 v11, v12, v11, vcc')
    k('s_waitcnt lgkmcnt(0)')
    srd_ws(k, 44, 4, WS_FLAG, 1024)
    k('s_lshl_b32 s39, s31, 7\nv_mov_b32 v20, 0\nbuffer_load_dword v248, v20, s[44:47], s39 offen sc1')
    srd_ws(k, 56, 4, WS_G1, 256 * G1_STRIDE)
    srd_ws(k, 60, 4, WS_O, S * 1280)
    k('s_lshl_b32 s36, s35, 4\nv_add_u32 v22, s36, v2')
    k(f'v_mul_u32_u24 v249, 80, v22\nv_mul_u32_u24 v13, 5120, v3\nv_add3_u32 v249, v249, v13, 0\nv_add_u32 v249, {PHI}, v249')
    k(f'v_mul_u32_u24 v250, 48, v22\nv_mul_u32_u24 v13, 3072, v3\nv_add3_u32 v250, v250, v13, 0\nv_add_u32 v250, {VV}, v250')
    k('v_bfe_u32 v12, v0, 2, 2\nv_lshl_add_u32 v12, v3, 3, v12\nv_and_b32 v13, 3, v0\nv_lshlrev_b32 v13, 3, v13')
    k(f's_mul_i32 s38, s35, 5120\ns_add_u32 s38, s38, {PHI}\ns_mul_i32 s37, s35, 3072\ns_add_u32 s37, s37, {VV}')
    k('v_mul_u32_u24 v251, 80, v12\nv_add3_u32 v251, v251, v13, s38\nv_mul_u32_u24 v252, 48, v12\nv_add3_u32 v252, v252, v13, s37')
    k(f's_lshl_b32 s68, s31, 5\ns_add_u32 s68, s68, s30\ns_mul_i32 s68, s68, {G1_STRIDE}\ns_mul_i32 s37, s35, 2240\ns_add_u32 s68, s68, s37')
    k('v_mul_u32_u24 v21, 80, v2\nv_lshl_add_u32 v21, v3, 3, v21\nv_add_u32 v21, s38, v21')
    k('v_cmp_gt_u32 s[50:51], 5, v2\nv_cmp_gt_u32 s[52:53], 2, v3\ns_and_b64 s[54:55], s[50:51], s[52:53]')
    k('v_mul_u32_u24 v253, 12, v0\nv_add_u32 v253, s38, v253')
    k('v_lshlrev_b32 v254, 4, v0\nv_cmp_gt_u32 vcc, 12, v0\nv_cndmask_b32 v255, v15, v254, vcc')
    CT = opt.get('ct', None)
    if CT:
        srd(k, 64, 's14', 's15', D * 1280); srd(k, 40, 's16', 's17', D * 3456); srd(k, 72, 's18', 's19', D * 3456); srd(k, 8, 's26', 's27', F * 1280)
        k(f's_lshl_b32 s22, s2, 2\ns_add_u32 s22, s22, s35\ns_mul_i32 s23, s22, {7 * 128}\ns_mul_i32 s22, s22, {17 * 128}')
        k('v_lshlrev_b32 v22, 7, v0\nv_cmp_gt_u32 vcc, 7, v0\nv_cndmask_b32 v23, v15, v22, vcc\nv_cmp_gt_u32 vcc, 17, v0\nv_cndmask_b32 v22, v15, v22, vcc')
    TCH = {'o': 'buffer_load_dword v1, v23, s[64:67], s23 offen', 'g': 'buffer_load_dword v1, v22, s[40:43], s22 offen',
           'u': 'buffer_load_dword v1, v22, s[72:75], s22 offen', 'd': 'buffer_load_dword v1, v22, s[8:11], s22 offen'}
    def ct(pos):
        if CT:
            for c in CT.get(pos, ''): k(TCH[c])
    k('s_barrier')
    st()
    k(f'{ring.rd_full(F_X)}\ns_waitcnt lgkmcnt(0)')
    ring.check_full(F_X)
    st()
    k('s_waitcnt vmcnt(0)\nv_add_u32 v248, 1, v248')
    ct(0)
    for ks in range(20):
        ln, ksl = ks // 2, ks % 2
        a = (4 if ln < 5 else 6) + ksl
        k(f'ds_read_b128 v[{XR + 4*ks}:{XR + 4*ks + 3}], v{a} offset:{(ln % 5) * 8192}')
    T = TMP
    k(f'v_mov_b32 v20, 0x3f803f80')
    for i in range(4): k(f'v_mov_b32 v{T+i}, 0')
    for ks in range(20):
        if ks % 4 == 0: k(f's_waitcnt lgkmcnt({min(15, 16 - ks)})')
        for i in range(4): k(f'v_dot2c_f32_bf16 v{T + i}, v{XR + 4*ks + i}, v20')
        if ks == 16: k(ring.set_free(R_X))
    k(f'v_add_f32 v{T}, v{T}, v{T+1}\nv_add_f32 v{T+2}, v{T+2}, v{T+3}\nv_add_f32 v{T}, v{T}, v{T+2}')
    red_g(k, T, T + 1)
    k(f'v_mul_f32 v12, {f2u(-1.0/640)}, v{T}')
    for i in range(80):
        a = T + 4 + 2 * (i % 4)
        k(f'v_lshlrev_b32 v{a}, 16, v{XR+i}\nv_and_b32 v{a+1}, 0xffff0000, v{XR+i}\nv_pk_add_f32 v[{a}:{a+1}], v[{a}:{a+1}], v[12:13] op_sel_hi:[1,0]\nv_cvt_pk_bf16_f32 v{XR+i}, v{a}, v{a+1}')
        if i == 70: k(ring.rd_full(0))
    st()
    ct(1)
    def waddr(slot): return (8 + slot // 3, (slot % 3) * SLOT)
    def rd(seg, ks):
        stage = seg * 5 + ks // 4; a, off = waddr(SLOT_OF[stage]); out = []
        for i_n in range(5):
            b = WB + (ks % 3) * 20 + i_n * 4
            for i in range(2):
                out.append(f'ds_read_b64_tr_b16 v[{b+2*i}:{b+2*i+1}], v{a} offset:{off + (ks % 4)*5120 + i*1280 + i_n*8}')
        return out
    def mf(ACC, ks, gram):
        out = []; x = XR + 4 * ks
        if gram:
            c = '0' if ks == 0 else f'v[{GR}:{GR+3}]'
            out.append(f'v_mfma_f32_16x16x32_bf16 v[{GR}:{GR+3}], v[{x}:{x+3}], v[{x}:{x+3}], {c}')
        for i_n in range(5):
            b = WB + (ks % 3) * 20 + i_n * 4; a = ACC + 4 * i_n
            c = '0' if ks == 0 else f'v[{a}:{a+3}]'
            out.append(f'v_mfma_f32_16x16x32_bf16 v[{a}:{a+3}], v[{b}:{b+3}], v[{x}:{x+3}], {c}')
        return out
    def gemm(seg, ACC, gram, hooks):
        for it in range(22):
            r = []
            if it < 20:
                if it % 4 == 0:
                    k('s_waitcnt lgkmcnt(0)' if it == 0 else 's_waitcnt lgkmcnt(10)')
                    ring.check_full(seg * 5 + it // 4)
                r = rd(seg, it)
                if it % 4 == 2 and it < 16: r = r + [ring.rd_full(seg * 5 + it // 4 + 1)]
            if it >= 2:
                younger = (10 if it - 1 < 20 else 0) + (1 if ((it - 1) % 4 == 2 and it - 1 < 16) else 0)
                k(f's_waitcnt lgkmcnt({younger})')
                for x in interleave(r, mf(ACC, it - 2, gram), 1.0): k(x)
            else:
                for x in r: k(x)
            if it in hooks: k(hooks[it])
    def load_wph():
        for i in range(5):
            for s in range(3):
                w = WPH + (i * 3 + s) * 4
                for h in range(2):
                    if s == 2 and h == 1: k(f'v_mov_b32 v{w+2}, 0\nv_mov_b32 v{w+3}, 0')
                    else: k(f'ds_read_b64_tr_b16 v[{w+2*h}:{w+2*h+1}], v11 offset:{(8*s + 4*h) * 40 + 8*i}')
    gemm(0, AK, True, {5: ring.set_free(R_S(0)), 9: ring.set_free(R_S(1)), 13: ring.set_free(R_S(2)), 17: ring.set_free(R_S(3)), 21: ring.set_free(R_K)})
    st()
    ct(2)
    load_wph()
    k('v_and_b32 v12, 3, v2')
    k(f'v_cmp_eq_u32 vcc, 1, v12\nv_cndmask_b32 v13, v{GR}, v{GR+1}, vcc\nv_cmp_eq_u32 vcc, 2, v12\nv_cndmask_b32 v13, v13, v{GR+2}, vcc\nv_cmp_eq_u32 vcc, 3, v12\nv_cndmask_b32 v13, v13, v{GR+3}, vcc')
    k('v_lshrrev_b32 v12, 2, v2\nv_cmp_eq_u32 vcc, v12, v3\nv_cndmask_b32 v13, 0, v13, vcc')
    red_g(k, 13, 12)
    k(f'v_mov_b32 v12, {f2u(1e-5)}\nv_fmac_f32 v12, {f2u(1.0/640)}, v13\nv_rsq_f32 v14, v12')
    RS = 14
    feature_map(k, AK, RS, TMP + 8, WPH, AV, AK, WPH, PK, TMP)
    k(f'{ring.rd_free(R_K)}\ns_waitcnt lgkmcnt(0)')
    ring.check(128 + 4 * R_K, 0)
    for i in range(5): k(f'ds_write_b128 v249, v[{PK + 4*i}:{PK + 4*i + 3}] offset:{16*i}')
    k(ring.rd_full(5))
    VB = TMP + 8
    k(f'v_mov_b32 v{VB+10}, 0x00003f80\nv_mov_b32 v{VB+11}, 0')
    ct(3)
    GB = PK
    st()
    gemm(1, AV, False, {5: ring.set_free(R_S(5)), 9: ring.set_free(R_S(6)), 13: ring.set_free(R_S(7)), 17: ring.set_free(R_S(8))})
    st()
    for i in range(10):
        k(f'v_pk_mul_f32 v[{AV + 2*i}:{AV + 2*i + 1}], v[{AV + 2*i}:{AV + 2*i + 1}], v[{RS}:{RS+1}] op_sel_hi:[1,0]')
    for i in range(10): k(f'v_cvt_pk_bf16_f32 v{VB + i}, v{AV + 2*i}, v{AV + 2*i + 1}')
    for i in range(3): k(f'ds_write_b128 v250, v[{VB + 4*i}:{VB + 4*i + 3}] offset:{16*i}')
    k(ring.set_free(R_PHI))
    k(f'{ring.rd_free(R_PHI)}\ns_waitcnt lgkmcnt(0)')
    ring.check(128 + 4 * R_PHI, 0)
    FA = WB; FBv = WB + 24
    for ks in range(2):
        for bb in range(2):
            for i in range(2):
                b = FBv + (ks * 2 + bb) * 4 + 2 * i
                k(f'ds_read_b64_tr_b16 v[{b}:{b+1}], v252 offset:{(ks*32 + i*4) * 48 + bb*32}')
        for a in range(3):
            for i in range(2):
                b = FA + (ks * 3 + a) * 4 + 2 * i
                k(f'ds_read_b64_tr_b16 v[{b}:{b+1}], v251 offset:{(ks*32 + i*4) * 80 + a*32}')
    KV = AK
    for ks in range(2):
        k(f's_waitcnt lgkmcnt({10 if ks == 0 else 0})')
        for a in range(3):
            for bb in range(2):
                d = KV + (a * 2 + bb) * 4; fa = FA + (ks*3 + a) * 4; fb = FBv + (ks*2 + bb) * 4
                c = '0' if ks == 0 else f'v[{d}:{d+3}]'
                k(f'v_mfma_f32_16x16x32_bf16 v[{d}:{d+3}], v[{fa}:{fa+3}], v[{fb}:{fb+3}], {c}')
    for i in range(3): k(f'v_mov_b32 v{GB + 4*i + 3}, v248')
    for a, bb in [(0, 0), (1, 0), (0, 1), (1, 1), (2, 0), (2, 1)]:
        d = KV + (a * 2 + bb) * 4; p = VB + (a * 2 + bb) * 2
        k(f'v_cvt_pk_bf16_f32 v{p}, v{d}, v{d+1}\nv_cvt_pk_bf16_f32 v{p+1}, v{d+2}, v{d+3}')
    for a, bb in [(0, 0), (1, 0), (0, 1), (1, 1), (2, 0), (2, 1)]:
        p = VB + (a * 2 + bb) * 2
        if (a, bb) == (0, 1): k('s_mov_b64 exec, s[50:51]')
        if (a, bb) == (2, 0): k('s_mov_b64 exec, s[52:53]')
        if (a, bb) == (2, 1): k('s_mov_b64 exec, s[54:55]')
        k(f'ds_write_b64 v21, v[{p}:{p+1}] offset:{bb*16*80 + a*32}')
    k('s_mov_b64 exec, -1')
    for i in range(3):
        k(f'ds_read_b32 v{GB + 4*i}, v253 offset:{768*i}\nds_read_b32 v{GB + 4*i + 1}, v253 offset:{768*i + 4}\nds_read_b32 v{GB + 4*i + 2}, v253 offset:{768*i + 8}')
    k(ring.rd_full(10))
    for i in range(3):
        k(f's_waitcnt lgkmcnt({7 - 3*i})\nbuffer_store_dwordx4 v[{GB + 4*i}:{GB + 4*i + 3}], v{254 if i < 2 else 255}, s[56:59], s68 offen offset:{1024*i} sc1')
    k(ring.set_free(R_ST))
    st()
    gemm(2, AK, False, {opt.get('stk', 7): f's_waitcnt vmcnt(0)\n{ring.set_free(R_DR)}'})
    load_wph()
    PQ = PK
    feature_map(k, AK, RS, TMP + 8, WPH, AV, AK, WPH, PQ, TMP)
    st()
    k(f'{ring.rd_free(R_ST)}')
    k('s_waitcnt lgkmcnt(0)')
    ring.check(128 + 4 * R_ST, 0)
    for i in range(5): k(f'ds_write_b128 v249, v[{PQ + 4*i}:{PQ + 4*i + 3}] offset:{16*i}')
    k(ring.set_free(R_PQ))
    k(f's_mul_i32 s36, s35, 5120\ns_add_u32 s36, s36, {PHI}\nv_mul_u32_u24 v5, 80, v2\nv_lshl_add_u32 v5, v3, 4, v5\nv_add_u32 v5, s36, v5')
    k('v_cmp_eq_u32 vcc, 0, v3\nv_cndmask_b32 v12, 0, -1, vcc')
    k(f's_mul_i32 s37, s35, 1680\ns_add_u32 s37, s37, {KVT}')
    k('v_mul_u32_u24 v6, 80, v2\nv_lshl_add_u32 v7, v3, 4, v6\nv_add_u32 v7, s37, v7\nv_add_u32 v6, s37, v6')
    k('v_and_b32 v8, 3, v2\nv_mul_u32_u24 v8, 80, v8\nv_lshl_add_u32 v9, v3, 4, v8\nv_add_u32 v9, s37, v9\nv_add_u32 v8, s37, v8')
    k('v_lshlrev_b32 v10, 4, v3\nv_add_u32 v10, s37, v10\nv_mov_b32 v11, s37')
    k(f's_mul_i32 s37, s35, 40\ns_add_u32 s37, s37, {OST}\nv_mul_u32_u24 v20, 160, v2\nv_add_u32 v20, s37, v20\nv_lshl_add_u32 v21, v3, 3, v20')
    k('s_lshl_b32 s36, s30, 6\ns_lshl_b32 s37, s35, 4\ns_add_u32 s36, s36, s37\ns_mul_i32 s36, s36, 1280\ns_mul_i32 s37, s31, 160\ns_add_u32 s36, s36, s37')
    k(f's_mul_i32 s37, s35, 2560\ns_add_u32 s37, s37, {OST}\nv_lshlrev_b32 v22, 4, v0\nv_add_u32 v22, s37, v22')
    for i in range(3):
        k(f'v_add_u32 v13, {64*i}, v0\nv_mul_u32_u24 v4, 6554, v13\nv_lshrrev_b32 v4, 16, v4\nv_mul_u32_u24 v23, 10, v4\nv_sub_u32 v23, v13, v23\nv_mul_u32_u24 v4, 1280, v4\nv_lshl_add_u32 v{250 + i}, v23, 4, v4')
    k('v_cmp_gt_u32 vcc, 32, v0\nv_cndmask_b32 v252, v15, v252, vcc')
    k(f'{ring.rd_free(R_PQ)}\ns_waitcnt lgkmcnt(0)')
    ring.check(128 + 4 * R_PQ, 0)
    BF = 24
    for tt in range(4):
        for ks in range(2):
            b = BF + (tt * 2 + ks) * 4
            k(f'ds_read_b128 v[{b}:{b+3}], v5 offset:{tt * 1280 + ks * 64}')
    k('s_waitcnt lgkmcnt(0)')
    for tt in range(4):
        for j in range(4): k(f'v_and_b32 v{BF + (tt*2 + 1)*4 + j}, v12, v{BF + (tt*2 + 1)*4 + j}')
    Lw = k.label('wkv'); Lgo = k.label('gokv')
    k(f'{Lw}:\n{ring.rd_full(F_SEEN)}\ns_waitcnt lgkmcnt(0)\nv_readfirstlane_b32 s70, v19\ns_cmp_lg_u32 s70, 0\ns_cbranch_scc1 {Lgo}\ns_sleep 1\ns_branch {Lw}\n{Lgo}:')
    AF = 56
    k(f'ds_read_b128 v[{AF}:{AF+3}], v10 offset:1600\nds_read_b128 v[{AF+4}:{AF+7}], v11 offset:1664')
    k(f'ds_read_b128 v[{AF+8}:{AF+11}], v7\nds_read_b128 v[{AF+12}:{AF+15}], v6 offset:64')
    k(f'ds_read_b128 v[{AF+16}:{AF+19}], v9 offset:1280\nds_read_b128 v[{AF+20}:{AF+23}], v8 offset:1344')
    O = 80
    for a in range(3):
        k(f's_waitcnt lgkmcnt({4 - 2*a})')
        for ks in range(2):
            for tt in range(4):
                d = O + (a * 4 + tt) * 4; fa = AF + (a * 2 + ks) * 4; fb = BF + (tt * 2 + ks) * 4
                c = '0' if ks == 0 else f'v[{d}:{d+3}]'
                k(f'v_mfma_f32_16x16x32_bf16 v[{d}:{d+3}], v[{fa}:{fa+3}], v[{fb}:{fb+3}], {c}')
        if a == 1:
            for tt in range(4): k(f'v_add_f32 v{O + 4*tt}, {f2u(1e-6)}, v{O + 4*tt}')
            for tt in range(4): k(f'v_rcp_f32 v{O + 4*tt}, v{O + 4*tt}')
    st()
    for a in (1, 2):
        for tt in range(4):
            d = O + (a * 4 + tt) * 4; r = O + 4 * tt; p = 128 + (a * 4 + tt) * 2
            k(f'v_pk_mul_f32 v[{d}:{d+1}], v[{d}:{d+1}], v[{r}:{r+1}] op_sel_hi:[1,0]\nv_pk_mul_f32 v[{d+2}:{d+3}], v[{d+2}:{d+3}], v[{r}:{r+1}] op_sel_hi:[1,0]')
            k(f'v_cvt_pk_bf16_f32 v{p}, v{d}, v{d+1}\nv_cvt_pk_bf16_f32 v{p+1}, v{d+2}, v{d+3}')
            if a == 1: k(f'ds_write_b64 v21, v[{p}:{p+1}] offset:{tt * 2560}')
            else: k(f'ds_write_b64 v20, v[{p}:{p+1}] offset:{tt * 2560 + 32}')
    k(ring.set_free(R_O))
    k(f'{ring.rd_free(R_O)}\ns_waitcnt lgkmcnt(0)')
    ring.check(128 + 4 * R_O, 0)
    for i in range(3): k(f'ds_read_b128 v[{24 + 4*i}:{27 + 4*i}], v22 offset:{1024*i}')
    for i in range(3): k(f's_waitcnt lgkmcnt({2 - i})\nbuffer_store_dwordx4 v[{24 + 4*i}:{27 + 4*i}], v{250 + i}, s[60:63], s36 offen')
    st.dump(0, 35)
    k('s_endpgm')
    ring.emit_slow()
    k.fix_hazards_fast()
    errs = k.check_waits()
    if errs: print(name, 'WAIT ERRS', errs[:10])
    return k, (name, 256, 512, LDS1)
```

```python
import sys; sys.path.insert(0,'gen')
from gemm import *
from k12 import k12_kernel
from k1g import k1_kernel
hdr = [l.rstrip('\n') for l in open('sequential_preLN__linear_kernel_hedgehog__glu_gated_geglu__prompt.s.ref') if l.startswith(';') and '@launch' not in l and 'Override' not in l and 'grid=ceil' not in l]
def mk(fn, o1={}, o3={}, o4={}, order=None, st=False):
    ks = [k12_kernel('k12_kernel', st, o1), gemm_kernel('k3_kernel','k3', st, {'nsp':8, 'ncs':8, **o3}), gemm_kernel('k4_kernel','k4', st, o4)]
    ls = [l for _,l in ks]
    if order: ls = [ls[i] for i in order]
    open(fn,'w').write(build_file(hdr, [k for k,_ in ks], ls))
def mk4(fn, o1={}, o2={}, o3={}, o4={}, order=None):
    ks = [k1_kernel('k1_kernel', False, o1), gemm_kernel('k2_kernel','k2', False, o2), gemm_kernel('k3_kernel','k3', False, o3), gemm_kernel('k4_kernel','k4', False, o4)]
    ls = [l for _,l in ks]
    if order: ls = [ls[i] for i in order]
    open(fn,'w').write(build_file(hdr, [k for k,_ in ks], ls))
sp = {'spol':'sc1'}
mk('h_a.s', {**sp, 'wa':'ogu'}, sp, sp)
mk('h_b.s', {**sp, 'wa':'ogu'}, sp, sp, order=[0,1,2,0,1,2])
mk4('h_c.s', {'t_gu':0, 't_wo':1}, {'t_wd':1, **sp}, sp, sp)
mk4('h_d.s', {'t_gu':0, 't_wo':1}, {'t_wd':1, **sp}, sp, sp, order=[0,1,2,3,0,1,2,3])
mk4('h_e.s', {'t_gu':0, 't_wo':0, 'ct':{1:'og', 2:'u', 3:'d'}}, {'t_wd':0, **sp}, sp, sp)
```

```python
from asmlib import *
from layout import *
import math, struct
f2u = lambda f: struct.unpack('<I', struct.pack('<f', f))[0]
OOB = 0x40000000

def srd(k, d, lo, hi, nbytes):
    k(f's_mov_b32 s{d}, {lo}\ns_mov_b32 s{d+1}, {hi}\ns_mov_b32 s{d+2}, {nbytes}\ns_mov_b32 s{d+3}, 0x20000')

def srd_ws(k, d, wslo, off, nbytes):
    k(f's_add_u32 s{d}, s{wslo}, {off}\ns_addc_u32 s{d+1}, s{wslo+1}, 0\ns_mov_b32 s{d+2}, {nbytes}\ns_mov_b32 s{d+3}, 0x20000')

def magic(c, maxv):
    for sh in range(4, 24):
        m = -(-(1 << sh) // c)
        if all((v * m) >> sh == v // c for v in range(maxv + 1)) and m * maxv < (1 << 31) and m < (1 << 24):
            return m, sh
    raise ValueError

def sdiv(k, dst, src, c, maxv):
    m, sh = magic(c, maxv)
    k(f's_mul_i32 s{dst}, s{src}, {m}\ns_lshr_b32 s{dst}, s{dst}, {sh}')

def vdiv(k, dst, src, c, maxv):
    m, sh = magic(c, maxv)
    k(f'v_mul_u32_u24 v{dst}, {m}, v{src}\nv_lshrrev_b32 v{dst}, {sh}, v{dst}')

def red_g(k, v, t):
    k(f'v_mov_b32 v{t}, v{v}\nv_permlane32_swap_b32 v{v}, v{t}\nv_add_f32 v{v}, v{v}, v{t}')
    k(f'v_mov_b32 v{t}, v{v}\nv_permlane16_swap_b32 v{v}, v{t}\nv_add_f32 v{v}, v{v}, v{t}')

def interleave(rd, mf, frac=0.75):
    out = []; nr = len(rd); nm = len(mf)
    per = max(1, -(-nr // max(1, int(nm * frac))))
    ri = 0
    for m in mf:
        out += rd[ri:ri + per]; ri += per
        out.append(m)
    return out + rd[ri:]

class Stamps:
    def __init__(self, k, on, slot): self.k = k; self.on = on; self.n = 0; self.slot = slot
    def __call__(self):
        if self.on:
            if self.on == 'dbg' and self.n == 0: self.k('s_memrealtime s[28:29]')
            self.k(f's_memtime s[{80 + 2*self.n}:{81 + 2*self.n}]'); self.n += 1
    def dump(self, role, wave_sgpr):
        if not self.on: return
        k = self.k
        if self.on == 'dbg':
            if role != 0: return
            L = k.label('nodbg')
            k('s_waitcnt lgkmcnt(0) vmcnt(0)')
            k(f's_memtime s[{80 + 2*self.n}:{81 + 2*self.n}]\ns_memrealtime s[24:25]\ns_load_dwordx2 s[22:23], s[0:1], {DBG}\ns_waitcnt lgkmcnt(0)'); n = self.n + 1
            k(f's_cmp_lg_u32 s2, 37\ns_cbranch_scc1 {L}\ns_cmp_lg_u32 s{wave_sgpr}, 0\ns_cbranch_scc1 {L}')
            srd_ws(k, 76, 4, WS_DBG, 256)
            pos = {3: 0, 1: 8, 2: 12}[self.slot]
            k('v_mov_b32 v1, 0')
            vals = ['s28', 's24']
            k(f'v_mov_b32 v2, s28\nbuffer_store_dword v2, v1, s[76:79], 0 offen offset:{4*pos}\nv_mov_b32 v2, s24\nbuffer_store_dword v2, v1, s[76:79], 0 offen offset:{4*pos+4}')
            sel = [1, 5, 7, 8, 9, 10] if self.slot == 3 else [2, n - 1]
            for j, i in enumerate(sel):
                k(f's_sub_u32 s3, s{80 + 2*i}, s80\nv_mov_b32 v2, s3\nbuffer_store_dword v2, v1, s[76:79], 0 offen offset:{4*(pos + 2 + j)}')
            k('s_waitcnt vmcnt(0)')
            if self.slot == 2:
                k('v_lshlrev_b32 v1, 2, v0\nbuffer_load_dword v2, v1, s[76:79], 0 offen sc1\ns_waitcnt vmcnt(0)')
                srd(k, 72, 's22', 's23', 64)
                k('buffer_store_dword v2, v1, s[72:75], 0 offen\ns_waitcnt vmcnt(0)')
            k(f'{L}:')
            return
        k('s_waitcnt lgkmcnt(0) vmcnt(0)')
        k(f's_memtime s[{80 + 2*self.n}:{81 + 2*self.n}]\ns_waitcnt lgkmcnt(0)'); n = self.n + 1
        srd_ws(k, 76, 4, WS_DBG + self.slot * 0x100000, 0x100000)
        k(f's_lshl_b32 s3, s2, 3\ns_add_u32 s3, s3, s{wave_sgpr}\ns_add_u32 s3, s3, {role}\ns_lshl_b32 s3, s3, 7')
        k('v_mov_b32 v1, 0')
        for i in range(n):
            k(f'v_mov_b32 v2, s{80 + 2*i}\nbuffer_store_dword v2, v1, s[76:79], s3 offen offset:{4*i}')
        k('s_waitcnt vmcnt(0)')

ALL4 = 0x01010101
class Ring:
    def __init__(self, k, FL, vA, vB, vOne, vF, sT):
        self.k = k; self.FL = FL; self.vA = vA; self.vB = vB; self.vOne = vOne; self.vF = vF; self.sT = sT; self.slow = []
    def setup(self, wave_sgpr, zero):
        k = self.k
        k(f'v_mov_b32 v{self.vB}, {self.FL}\nv_add_u32 v{self.vA}, s{wave_sgpr}, v{self.vB}\nv_mov_b32 v{self.vOne}, 1')
        if zero:
            k(f'v_lshl_add_u32 v{self.vF}, v0, 2, v{self.vB}\nv_mov_b32 v{self.vOne}, 0\nds_write_b32 v{self.vF}, v{self.vOne}\ns_waitcnt lgkmcnt(0)\nv_mov_b32 v{self.vOne}, 1')
    def rd(self, off): return f'ds_read_b32 v{self.vF}, v{self.vB} offset:{off}'
    def rd_full(self, j): return self.rd(4 * j)
    def rd_free(self, j): return self.rd(128 + 4 * j)
    def set_full(self, j): return f'ds_write_b8 v{self.vA}, v{self.vOne} offset:{4 * j}'
    def set_free(self, j): return f'ds_write_b8 v{self.vA}, v{self.vOne} offset:{128 + 4 * j}'
    def check(self, off, sleep=1):
        k = self.k
        Ls = k.label('slow'); Lb = k.label('back')
        k(f'v_readfirstlane_b32 s{self.sT}, v{self.vF}\ns_cmp_eq_u32 s{self.sT}, {ALL4}\ns_cbranch_scc0 {Ls}\n{Lb}:')
        self.slow.append((Ls, Lb, off, sleep))
    def check_full(self, j): self.check(4 * j)
    def check_free(self, j): self.check(128 + 4 * j)
    def emit_slow(self):
        k = self.k
        for Ls, Lb, off, sleep in self.slow:
            k(f'{Ls}:\n{self.rd(off)}\ns_waitcnt lgkmcnt(0)\nv_readfirstlane_b32 s{self.sT}, v{self.vF}\ns_cmp_eq_u32 s{self.sT}, {ALL4}\ns_cbranch_scc1 {Lb}\ns_sleep {sleep}\ns_branch {Ls}')
        self.slow = []
```

```python
import sys; sys.path.insert(0,'gen')
from gemm import *
from k12 import k12_kernel
from k1g import k1_kernel
hdr = [l.rstrip('\n') for l in open('sequential_preLN__linear_kernel_hedgehog__glu_gated_geglu__prompt.s.ref') if l.startswith(';') and '@launch' not in l and 'Override' not in l and 'grid=ceil' not in l]
def mk(fn, o1={}, o3={}, o4={}, order=None, st=False):
    ks = [k12_kernel('k12_kernel', st, o1), gemm_kernel('k3_kernel','k3', st, {'nsp':8, 'ncs':8, **o3}), gemm_kernel('k4_kernel','k4', st, o4)]
    ls = [l for _,l in ks]
    if order: ls = [ls[i] for i in order]
    open(fn,'w').write(build_file(hdr, [k for k,_ in ks], ls))
def mk4(fn, o1={}, o2={}, o3={}, o4={}, order=None):
    ks = [k1_kernel('k1_kernel', False, o1), gemm_kernel('k2_kernel','k2', False, o2), gemm_kernel('k3_kernel','k3', False, o3), gemm_kernel('k4_kernel','k4', False, o4)]
    ls = [l for _,l in ks]
    if order: ls = [ls[i] for i in order]
    open(fn,'w').write(build_file(hdr, [k for k,_ in ks], ls))
sp = {'spol':'sc1'}
mk('h_a.s', {**sp, 'wa':'ogu'}, sp, sp, st='dbg')
```

```python
from common import *
from k1 import tile_map, LOG2E
WS_FLAG = 0x0F00000
SLOT = 20480; NSL = 7
XB = 3 * SLOT
MISC_W = NSL * SLOT
MISC_Z = MISC_W + 3200
FL = MISC_W + 4096
KVT = FL + 256
VV = KVT
LDS1 = VV + 12288 + 64
PHI = 4 * SLOT
SLOT_OF = [0, 1, 2, 3, 4, 5, 6, 0, 1, 2, 3, 5, 6, 0, 1]
OST = 2 * SLOT
F_X, F_SEEN, F_WO = 15, 16, 17
R_X, R_K, R_PHI, R_ST, R_PQ, R_O = 0, 1, 3, 4, 6, 7
R_DR = 2
R_Q = 5
WS_OF = WS_O
WS_F1 = WS_FLAG + 0x1000
WO_SLOT = [0, 1, 3, 5, 6]
R_S = lambda s: 8 + s
NCS = 8
G1_STRIDE = 9216
WS_G1 = 0x0300000
WS_G2 = 0x0580000

def feature_map(k, ACC, RS2, QB, WPH, P, EP, EM, OUTP, T):
    for i in range(10):
        k(f'v_pk_mul_f32 v[{ACC + 2*i}:{ACC + 2*i + 1}], v[{ACC + 2*i}:{ACC + 2*i + 1}], v[{RS2}:{RS2+1}] op_sel_hi:[1,0]')
    for i in range(10):
        k(f'v_cvt_pk_bf16_f32 v{QB + i}, v{ACC + 2*i}, v{ACC + 2*i + 1}')
    k(f'v_mov_b32 v{QB + 10}, 0\nv_mov_b32 v{QB + 11}, 0\ns_waitcnt lgkmcnt(0)')
    for i in range(5):
        for s in range(3):
            w = WPH + (i * 3 + s) * 4; p = P + 4 * i; b = QB + 4 * s
            c = '0' if s == 0 else f'v[{p}:{p+3}]'
            k(f'v_mfma_f32_16x16x32_bf16 v[{p}:{p+3}], v[{w}:{w+3}], v[{b}:{b+3}], {c}')
    mx, mn = T, T + 2
    k(f'v_max3_f32 v{mx}, v{P}, v{P+1}, v{P+2}\nv_min3_f32 v{mn}, v{P}, v{P+1}, v{P+2}')
    for i in range(3, 19, 2):
        k(f'v_max3_f32 v{mx}, v{mx}, v{P+i}, v{P+i+1}\nv_min3_f32 v{mn}, v{mn}, v{P+i}, v{P+i+1}')
    k(f'v_max_f32 v{mx}, v{mx}, v{P+19}\nv_min_f32 v{mn}, v{mn}, v{P+19}')
    k(f'v_mov_b32 v{T+4}, {f2u(LOG2E)}')
    k(f'v_mul_f32 v{mx}, v{T+4}, v{mx}\nv_mul_f32 v{mn}, v{T+4}, v{mn}')
    L = f'v[{T+4}:{T+5}]'
    for i in range(0, 20, 2):
        k(f'v_pk_fma_f32 v[{EP+i}:{EP+i+1}], v[{P+i}:{P+i+1}], {L}, v[{mx}:{mx+1}] op_sel_hi:[1,0,0] neg_lo:[0,0,1] neg_hi:[0,0,1]')
        k(f'v_pk_fma_f32 v[{EM+i}:{EM+i+1}], v[{P+i}:{P+i+1}], {L}, v[{mn}:{mn+1}] op_sel_hi:[1,0,0] neg_lo:[1,0,0] neg_hi:[1,0,0]')
    for i in range(20):
        k(f'v_exp_f32 v{EP+i}, v{EP+i}\nv_exp_f32 v{EM+i}, v{EM+i}')
    sp, sm = T, T + 2
    k(f'v_pk_add_f32 v[{sp}:{sp+1}], v[{EP}:{EP+1}], v[{EP+2}:{EP+3}]\nv_pk_add_f32 v[{sm}:{sm+1}], v[{EM}:{EM+1}], v[{EM+2}:{EM+3}]')
    for i in range(4, 20, 2):
        k(f'v_pk_add_f32 v[{sp}:{sp+1}], v[{sp}:{sp+1}], v[{EP+i}:{EP+i+1}]\nv_pk_add_f32 v[{sm}:{sm+1}], v[{sm}:{sm+1}], v[{EM+i}:{EM+i+1}]')
    k(f'v_add_f32 v{sp}, v{sp}, v{sp+1}\nv_add_f32 v{sm}, v{sm}, v{sm+1}')
    k(f'v_rcp_f32 v{sp}, v{sp}\nv_rcp_f32 v{sm}, v{sm}')
    for i in range(0, 20, 2):
        k(f'v_pk_mul_f32 v[{EP+i}:{EP+i+1}], v[{EP+i}:{EP+i+1}], v[{sp}:{sp+1}] op_sel_hi:[1,0]\nv_pk_mul_f32 v[{EM+i}:{EM+i+1}], v[{EM+i}:{EM+i+1}], v[{sm}:{sm+1}] op_sel_hi:[1,0]')
    for i in range(10):
        k(f'v_cvt_pk_bf16_f32 v{OUTP+i}, v{EP+2*i}, v{EP+2*i+1}\nv_cvt_pk_bf16_f32 v{OUTP+10+i}, v{EM+2*i}, v{EM+2*i+1}')

def k12_kernel(name, stamps=False, opt=None):
    opt = opt or {}
    CAP = opt.get('cap', 7); BO = opt.get('bo', 4)
    k = Kernel(name)
    Lend = k.label('end'); Lcomp = k.label('comp')
    k(f's_cmp_ge_u32 s2, 256\ns_cbranch_scc1 {Lend}')
    st = Stamps(k, stamps, 3); st()
    k(f's_load_dwordx4 s[8:11], s[0:1], {A_X}\ns_load_dwordx4 s[12:15], s[0:1], {A_WPHI}\ns_load_dwordx4 s[16:19], s[0:1], {B_WG}\ns_load_dwordx2 s[4:5], s[0:1], {WS}\ns_load_dwordx2 s[26:27], s[0:1], {B_WD}')
    k('v_lshrrev_b32 v1, 6, v0\nv_and_b32 v0, 63, v0')
    if opt.get('map81'):
        k('s_and_b32 s20, s2, 7\ns_lshr_b32 s21, s2, 3\ns_and_b32 s23, s21, 3\ns_lshl_b32 s30, s20, 2\ns_add_u32 s30, s30, s23\ns_lshr_b32 s31, s21, 2')
        k('s_mul_i32 s32, s23, 3\ns_add_u32 s32, s32, s31\ns_cmp_ge_u32 s32, 10\ns_cselect_b32 s24, 10, 0\ns_sub_u32 s32, s32, s24')
    else:
        tile_map(k)
    k('v_readfirstlane_b32 s35, v1')
    k(f's_cmp_lt_u32 s35, 4\ns_cbranch_scc1 {Lcomp}')

    k('s_sub_u32 s35, s35, 4')
    k('v_lshrrev_b32 v1, 3, v0\nv_and_b32 v2, 7, v0\nv_lshrrev_b32 v3, 4, v0')
    k('s_lshl_b32 s36, s30, 6\ns_lshl_b32 s37, s35, 4\ns_add_u32 s36, s36, s37\nv_add_u32 v20, s36, v1')
    k('v_mul_u32_u24 v20, 1280, v20\nv_xor_b32 v21, v2, v3\nv_lshl_add_u32 v4, v21, 4, v20')
    k(f'v_xor_b32 v21, 4, v21\nv_lshl_add_u32 v5, v21, 4, v20\nv_add_u32 v5, {8 * 1280}, v5')
    k('s_lshl_b32 s64, s35, 11\ns_mov_b32 s66, s32')
    k('s_waitcnt lgkmcnt(0)')
    srd(k, 40, 's8', 's9', S * 1280)
    st()
    vm = []
    for j in range(10):
        k('s_lshl_b32 s67, s66, 7')
        for h in range(2):
            k(f's_add_u32 m0, s64, {XB + j*8192 + h*1024}\nbuffer_load_dwordx4 v{4+h}, s[40:43], s67 offen lds'); vm.append(F_X)
        k('s_add_u32 s66, s66, 1\ns_cmp_eq_u32 s66, 10\ns_cselect_b32 s66, 0, s66')
    srd(k, 44, 's10', 's11', D * 3840)
    srd_ws(k, 56, 4, WS_FLAG, 1024)
    k('v_mov_b32 v19, 0\nbuffer_load_dword v80, v19, s[56:59], 0 offen sc1'); vm.append(F_X)
    for i in range(5):
        k(f'v_add_u32 v20, {64*i}, v0\nv_mul_u32_u24 v21, 6554, v20\nv_lshrrev_b32 v21, 16, v21')
        k('v_mul_u32_u24 v22, 10, v21\nv_sub_u32 v22, v20, v22')
        k('v_and_b32 v23, 0x13, v21\nv_bfe_u32 v24, v21, 2, 1\nv_lshl_or_b32 v23, v24, 3, v23\nv_bfe_u32 v24, v21, 3, 1\nv_lshl_or_b32 v23, v24, 2, v23')
        k(f'v_mul_u32_u24 v23, 3840, v23\nv_lshl_add_u32 v{6+i}, v22, 4, v23')
    ring = Ring(k, FL, 12, 13, 14, 15, 70)
    ring.setup(35, False)
    k('s_mul_i32 s65, s35, 5120\ns_mul_i32 s69, s31, 160')
    k('s_lshl_b32 s66, s32, 1\ns_add_u32 s66, s66, s35\ns_cmp_ge_u32 s66, 20\ns_cselect_b32 s67, 20, 0\ns_sub_u32 s66, s66, s67')
    srd(k, 48, 's12', 's13', 32 * 800)
    k(f's_lshl_b32 s36, s35, 6\nv_add_u32 v20, s36, v0\nv_cmp_gt_u32 vcc, 200, v20\nv_lshlrev_b32 v20, 4, v20\nv_mov_b32 v21, {OOB}\nv_cndmask_b32 v11, v21, v20, vcc')
    k('s_barrier')
    order = [F_X] + list(range(15)); pub = [0]
    cnt = {F_X: 21, **{s: 5 for s in range(15)}}; cnt[1] = 6
    def publish(final=False):
        while pub[0] < len(order):
            j = order[pub[0]]
            idxs = [i for i, t in enumerate(vm) if t == j]
            if len(idxs) < cnt[j]: return
            n = len(vm) - 1 - idxs[-1]
            cap = opt.get('capx', 3) if j == F_X else CAP
            if n < cap and not final: return
            k(f's_waitcnt vmcnt({n})\n{ring.set_full(j)}')
            if j in (F_X, 4): st()
            pub[0] += 1
    slow_extra = []
    def need_free(r, s):
        k(f'{ring.rd_free(r)}\ns_waitcnt lgkmcnt(0)')
        Ls = k.label('lslow'); Lb = k.label('lback'); Lp = k.label('lpoll')
        k(f'v_readfirstlane_b32 s70, v15\ns_cmp_eq_u32 s70, {ALL4}\ns_cbranch_scc0 {Ls}\n{Lb}:')
        pend = order[pub[0]:order.index(s)]
        txt = f'{Ls}:\n'
        for j in pend:
            idxs = [i for i, t in enumerate(vm) if t == j]
            txt += f's_waitcnt vmcnt({len(vm) - 1 - idxs[-1]})\n{ring.set_full(j)}\n'
        txt += f'{Lp}:\n{ring.rd_free(r)}\ns_waitcnt lgkmcnt(0)\nv_readfirstlane_b32 s70, v15\ns_cmp_eq_u32 s70, {ALL4}\ns_cbranch_scc1 {Lb}\ns_sleep 1\ns_branch {Lp}'
        slow_extra.append(txt)
    def touch(srd_, nl, per, dst):
        for i in range(-(-per // 64)):
            n = min(64, per - 64 * i)
            k(f's_mul_i32 s36, s2, {per * 128}\ns_add_u32 s36, s36, {64 * i * 128}')
            if n < 64: k(f'v_cmp_gt_u32 vcc, {n}, v0\nv_cndmask_b32 v22, v21, v20, vcc')
            k(f'buffer_load_dword v{dst + i}, v{20 if n == 64 else 22}, s[{srd_}:{srd_+3}], s36 offen')
    SEG = [1, 2, 0]
    NEED = {7: 0, 8: 1, 9: 2, 10: 3, 11: 5, 12: 6, 13: 7, 14: 8}
    for s in range(15):
        if s == 3: need_free(R_X, s)
        if s in NEED: need_free(R_S(NEED[s]), s)
        if s == opt.get('wa_at', 10) and opt.get('wa'):
            publish(True)
            k(f's_lshl_b32 s22, s2, 2\ns_add_u32 s22, s22, s35\ns_mul_i32 s23, s22, {7 * 128}\ns_mul_i32 s22, s22, {17 * 128}')
            k('v_lshlrev_b32 v22, 7, v0\nv_cmp_gt_u32 vcc, 7, v0\nv_cndmask_b32 v23, v21, v22, vcc\nv_cmp_gt_u32 vcc, 17, v0\nv_cndmask_b32 v22, v21, v22, vcc')
            for n, c in enumerate(opt['wa']):
                lo, nb = {'o': (14, D * 1280), 'g': (16, D * 3456), 'u': (18, D * 3456), 'd': (26, F * 1280)}[c]
                srd(k, 60, f's{lo}', f's{lo+1}', nb)
                k(f'buffer_load_dword v{84 + n}, v{23 if c == "o" else 22}, s[60:63], s{23 if c == "o" else 22} offen'); vm.append('t')
        k(f's_mul_i32 s67, s66, {32 * 3840}\ns_add_u32 s67, s67, s69\ns_add_u32 s67, s67, {SEG[s // 5] * 1280}')
        for i in range(5):
            k(f's_add_u32 m0, s65, {SLOT_OF[s] * SLOT + i*1024}\nbuffer_load_dwordx4 v{6+i}, s[44:47], s67 offen lds'); vm.append(s); publish()
        if s == 1:
            k(f's_mul_i32 s37, s31, 3200\ns_lshl_b32 s36, s35, 10\ns_add_u32 m0, s36, {MISC_W}')
            k('buffer_load_dwordx4 v11, s[48:51], s37 offen lds'); vm.append(1); publish()
        k('s_add_u32 s66, s66, 4\ns_cmp_ge_u32 s66, 20\ns_cselect_b32 s67, 20, 0\ns_sub_u32 s66, s66, s67')
    publish(True)
    st()
    Lcs = k.label('cs'); Ldone = k.label('ldone'); Ltch = k.label('tch'); Lh2 = k.label('h2')
    k(f's_sub_u32 s36, s35, 1\ns_cmp_lt_u32 s36, 2\ns_cbranch_scc1 {Lcs}')
    srd_ws(k, 52, 4, WS_G1, 256 * G1_STRIDE); srd_ws(k, 60, 4, WS_G2, 8 * G1_STRIDE)
    k(f's_cmp_eq_u32 s35, 0\ns_cselect_b32 s36, 0, 32\ns_add_u32 s36, s36, s30\ns_cmp_ge_u32 s36, 35\ns_cbranch_scc1 {Ltch}')
    Lps = k.label('ps'); Lgs = k.label('gs'); Lp1 = k.label('p1'); Ld1 = k.label('d1')
    k('v_add_u32 v80, 1, v80\ns_nop 0\nv_readfirstlane_b32 s72, v80')
    if opt.get('hprio', 3): k(f's_setprio {opt.get("hprio", 3)}')
    k(f's_lshl_b32 s37, s31, 5\ns_mul_i32 s37, s37, {G1_STRIDE}\ns_lshl_b32 s38, s36, 8\ns_add_u32 s37, s37, s38')
    k(f'v_and_b32 v20, 15, v0\nv_lshlrev_b32 v20, 4, v20\nv_mul_u32_u24 v22, {G1_STRIDE}, v3\nv_add_u32 v22, v22, v20')
    k('v_mov_b32 v4, 0x00003f80\nv_mov_b32 v5, 0x3f800000')
    k(f'{Lps}:\n{ring.rd_free(R_DR)}\ns_waitcnt lgkmcnt(0)\nv_readfirstlane_b32 s70, v15\ns_cmp_eq_u32 s70, {ALL4}\ns_cbranch_scc1 {Lgs}\ns_sleep 1\ns_branch {Lps}\n{Lgs}:')
    st()
    if opt.get('pre1', 0): k(f's_sleep {opt["pre1"]}')
    k(f's_mov_b32 s71, 100000\n{Lp1}:\ns_mov_b32 s38, s37')
    for i in range(8):
        k(f'buffer_load_dwordx4 v[{32 + 4*i}:{35 + 4*i}], v22, s[52:55], s38 offen sc1\ns_add_u32 s38, s38, {4 * G1_STRIDE}')
    k('s_waitcnt vmcnt(0)')
    k('v_xor_b32 v25, s72, v35')
    for i in range(1, 8): k(f'v_xor_b32 v26, s72, v{35 + 4*i}\nv_or_b32 v25, v25, v26')
    k(f'v_cmp_ne_u32 vcc, 0, v25\ns_cmp_eq_u64 vcc, 0\ns_cbranch_scc1 {Ld1}\ns_sleep {BO}\ns_sub_u32 s71, s71, 1\ns_cmp_lg_u32 s71, 0\ns_cbranch_scc1 {Lp1}\n{Ld1}:')
    st()
    for j in range(3):
        k(f'v_lshlrev_b32 v{64 + 2*j}, 16, v{32 + j}\nv_and_b32 v{65 + 2*j}, 0xffff0000, v{32 + j}')
    for i in range(1, 8):
        for j in range(3):
            k(f'v_lshlrev_b32 v25, 16, v{32 + 4*i + j}\nv_and_b32 v26, 0xffff0000, v{32 + 4*i + j}\nv_add_f32 v{64 + 2*j}, v{64 + 2*j}, v25\nv_add_f32 v{65 + 2*j}, v{65 + 2*j}, v26')
    for j in range(6): k(f'v_mov_b32 v{72 + j}, v{64 + j}')
    for j in range(6): k(f'v_permlane32_swap_b32 v{64 + j}, v{72 + j}')
    for j in range(6): k(f'v_add_f32 v{64 + j}, v{64 + j}, v{72 + j}')
    for j in range(6): k(f'v_mov_b32 v{72 + j}, v{64 + j}')
    for j in range(6): k(f'v_permlane16_swap_b32 v{64 + j}, v{72 + j}')
    for j in range(6): k(f'v_add_f32 v{64 + j}, v{64 + j}, v{72 + j}')
    for j in range(3): k(f'v_cvt_pk_bf16_f32 v{28 + j}, v{64 + 2*j}, v{65 + 2*j}')
    k(f'v_mov_b32 v31, s72\ns_mul_i32 s37, s31, {G1_STRIDE}\ns_lshl_b32 s38, s36, 8\ns_add_u32 s38, s38, s37')
    k('s_mov_b64 exec, 0xffff\nbuffer_store_dwordx4 v[28:31], v20, s[60:63], s38 offen sc1\ns_mov_b64 exec, -1')
    k(f's_cmp_eq_u32 s35, 0\ns_cbranch_scc1 {Lh2}')
    k(f'{Ltch}:')
    if opt.get('t_wd', 1):
        Lw = k.label('wseen3'); Lgo = k.label('tgo3')
        srd(k, 72, 's26', 's27', F * 1280)
        k('s_setprio 0\nv_lshlrev_b32 v20, 7, v0')
        k(f'{Lw}:\n{ring.rd_free(opt.get("wd_after", R_O))}\ns_waitcnt lgkmcnt(0)\nv_readfirstlane_b32 s70, v15\ns_cmp_eq_u32 s70, {ALL4}\ns_cbranch_scc1 {Lgo}\ns_sleep 4\ns_branch {Lw}\n{Lgo}:')
        touch(72, 17280, 68, 16)
    k(f's_branch {Ldone}')
    k(f'{Lh2}:')
    Lp2 = k.label('p2'); Ld2 = k.label('d2')
    k(f'v_lshlrev_b32 v20, 4, v0\nv_mul_u32_u24 v22, 12, v0\nv_add_u32 v22, {KVT}, v22\nv_add_u32 v23, 8192, v20\nv_cmp_gt_u32 vcc, 48, v0\nv_cndmask_b32 v23, v20, v23, vcc')
    st()
    k('s_waitcnt vmcnt(0)')
    if opt.get('pre2', 0): k(f's_sleep {opt["pre2"]}')
    k(f's_add_u32 s38, s37, 4096\ns_mov_b32 s71, 100000\n{Lp2}:')
    for i in range(8):
        k(f'buffer_load_dwordx4 v[{32 + 4*i}:{35 + 4*i}], v20, s[60:63], {"s37" if i < 4 else "s38"} offen offset:{(i % 4) * 1024} sc1')
    k('buffer_load_dwordx4 v[64:67], v23, s[60:63], s37 offen sc1')
    k('s_waitcnt vmcnt(0)')
    k('v_xor_b32 v25, s72, v35')
    for i in range(1, 9): k(f'v_xor_b32 v26, s72, v{35 + 4*i}\nv_or_b32 v25, v25, v26')
    k(f'v_cmp_ne_u32 vcc, 0, v25\ns_cmp_eq_u64 vcc, 0\ns_cbranch_scc1 {Ld2}\ns_sleep {BO}\ns_sub_u32 s71, s71, 1\ns_cmp_lg_u32 s71, 0\ns_cbranch_scc1 {Lp2}\n{Ld2}:')
    st()
    for i in range(9):
        k(f'ds_write_b32 v22, v{32 + 4*i} offset:{768*i}\nds_write_b32 v22, v{33 + 4*i} offset:{768*i + 4}\nds_write_b32 v22, v{34 + 4*i} offset:{768*i + 8}')
    k(ring.set_full(F_SEEN))
    k(f's_branch {Ldone}')
    k(f'{Lcs}:')
    srd(k, 52, 's14', 's15', D * 1280)
    for i in range(5):
        k(f'v_add_u32 v20, {64*i}, v0\nv_mul_u32_u24 v25, 6554, v20\nv_lshrrev_b32 v25, 16, v25')
        k('v_mul_u32_u24 v22, 10, v25\nv_sub_u32 v22, v20, v22')
        k('v_and_b32 v23, 0x13, v25\nv_bfe_u32 v24, v25, 2, 1\nv_lshl_or_b32 v23, v24, 3, v23\nv_bfe_u32 v24, v25, 3, 1\nv_lshl_or_b32 v23, v24, 2, v23')
        k(f'v_mul_u32_u24 v23, 1280, v23\nv_lshl_add_u32 v{6+i}, v22, 4, v23')
    k(f's_mul_i32 s65, s36, 5120\ns_mul_i32 s67, s36, {32 * 1280}\ns_add_u32 s67, s67, s69')
    Lw = k.label('wq'); Lgo = k.label('qgo')
    k(f'{Lw}:\n{ring.rd_free(R_Q)}\ns_waitcnt lgkmcnt(0)\nv_readfirstlane_b32 s70, v15\ns_cmp_eq_u32 s70, {ALL4}\ns_cbranch_scc1 {Lgo}\ns_sleep 2\ns_branch {Lw}\n{Lgo}:')
    for u2 in range(10):
        u = 2 * u2
        for i in range(5):
            k(f's_add_u32 m0, s65, {WO_SLOT[u // 4] * SLOT + (u % 4) * 5120 + i*1024}\nbuffer_load_dwordx4 v{6+i}, s[52:55], s67 offen lds')
        k(f's_add_u32 s67, s67, {64 * 1280}')
    k(f's_waitcnt vmcnt(0)\n{ring.set_full(F_WO)}')
    k(f's_cmp_ge_u32 s2, 216\ns_cbranch_scc1 {Ldone}')
    if opt.get('cs_after') is not None:
        Lw = k.label('wcs'); Lgo = k.label('csgo')
        k(f'{Lw}:\n{ring.rd_free(opt["cs_after"])}\ns_waitcnt lgkmcnt(0)\nv_readfirstlane_b32 s70, v15\ns_cmp_eq_u32 s70, {ALL4}\ns_cbranch_scc1 {Lgo}\ns_sleep 4\ns_branch {Lw}\n{Lgo}:')
    srd_ws(k, 60, 4, WS_CS, NCS * 3456 * 4)
    k('s_and_b32 s37, s2, 3\ns_lshl_b32 s37, s37, 1\ns_add_u32 s37, s37, s36\ns_lshr_b32 s36, s2, 2')
    k('s_cmp_ge_u32 s36, 27\ns_cselect_b32 s72, s18, s16\ns_cselect_b32 s73, s19, s17\ns_cselect_b32 s38, 27, 0\ns_sub_u32 s38, s36, s38')
    k(f's_mov_b32 s74, {D * 3456}\ns_mov_b32 s75, 0x20000')
    k(f's_mul_i32 s39, s37, {80 * 3456}\ns_lshl_b32 s38, s38, 7\ns_add_u32 s39, s39, s38')
    k('v_mul_u32_u24 v20, 3456, v1\nv_lshl_add_u32 v20, v2, 4, v20')
    for i in range(10):
        k(f'buffer_load_dwordx4 v[{24 + 4*i}:{27 + 4*i}], v20, s[72:75], s39 offen\ns_add_u32 s39, s39, {8 * 3456}')
    A = 64
    for i in range(10):
        k(f's_waitcnt vmcnt({9 - i})')
        for j in range(4):
            if i == 0: k(f'v_lshlrev_b32 v{A + 2*j}, 16, v{24 + j}\nv_and_b32 v{A + 1 + 2*j}, 0xffff0000, v{24 + j}')
            else: k(f'v_lshlrev_b32 v22, 16, v{24 + 4*i + j}\nv_and_b32 v23, 0xffff0000, v{24 + 4*i + j}\nv_add_f32 v{A + 2*j}, v{A + 2*j}, v22\nv_add_f32 v{A + 1 + 2*j}, v{A + 1 + 2*j}, v23')
    for j in range(8): k(f'v_add_f32_dpp v{A+j}, v{A+j}, v{A+j} row_ror:8 row_mask:0xf bank_mask:0xf')
    for j in range(0, 8, 2): k(f'v_permlane32_swap_b32 v{A+j}, v{A+j+1}')
    for j in range(0, 8, 2): k(f'v_add_f32 v{A+j}, v{A+j}, v{A+j+1}')
    for j in (0, 4): k(f'v_permlane16_swap_b32 v{A+j}, v{A+j+2}')
    for j in (0, 4): k(f'v_add_f32 v{A+j}, v{A+j}, v{A+j+2}')
    k(f's_mul_i32 s37, s37, {3456 * 4}\ns_lshl_b32 s36, s36, 8\ns_add_u32 s37, s37, s36')
    k('v_and_b32 v23, 1, v3\nv_lshlrev_b32 v23, 1, v23\nv_lshrrev_b32 v22, 1, v3\nv_add_u32 v22, v22, v23\nv_lshlrev_b32 v22, 2, v22\nv_lshl_add_u32 v22, v2, 5, v22')
    k(f'buffer_store_dword v{A}, v22, s[60:63], s37 offen\nbuffer_store_dword v{A+4}, v22, s[60:63], s37 offen offset:16')
    if stamps: k('s_endpgm')
    k(f'{Ldone}:')
    st.dump(4, 35)
    k(f'{Lend}:\ns_endpgm')
    for t in slow_extra: k(t)

    k(f'{Lcomp}:')
    st.n = 1
    XR = 24; WB = 104; WPH = 104; AK = 164; AV = 184; GR = 204; PK = 208; TMP = 228
    ring = Ring(k, FL, 16, 17, 18, 19, 70)
    ring.setup(35, True)
    k(f'v_mov_b32 v15, {OOB}')
    if opt.get('codepf', True):
        k('s_getpc_b64 s[76:77]\ncode_pc_anchor:\ns_sub_u32 s76, s76, code_pc_anchor-code_begin\ns_subb_u32 s77, s77, 0\ns_mov_b32 s78, code_end-code_begin\ns_mov_b32 s79, 0x20000')
        k('s_lshl_b32 s36, s21, 2\ns_add_u32 s36, s36, s35\ns_lshl_b32 s36, s36, 7')
        k('v_lshlrev_b32 v11, 14, v0\nv_cmp_gt_u32 vcc, 4, v0\nv_cndmask_b32 v11, v15, v11, vcc')
        k('buffer_load_dword v1, v11, s[76:79], s36 offen')
    k('v_and_b32 v2, 15, v0\nv_lshrrev_b32 v3, 4, v0')
    k('v_lshrrev_b32 v8, 1, v2\nv_xor_b32 v8, v3, v8\nv_lshlrev_b32 v8, 4, v8\nv_lshl_add_u32 v4, v2, 7, v8')
    k(f's_lshl_b32 s36, s35, 11\ns_add_u32 s36, s36, {XB}\nv_add_u32 v4, s36, v4\nv_xor_b32 v5, 64, v4')
    k(f'v_add_u32 v6, {5 * 8192}, v4\nv_add_u32 v7, {5 * 8192}, v5')
    k('v_lshrrev_b32 v11, 5, v0\nv_lshlrev_b32 v11, 4, v11\nv_bfe_u32 v12, v0, 4, 1\nv_lshl_add_u32 v11, v12, 2, v11\nv_bfe_u32 v12, v0, 2, 2\nv_add_u32 v11, v11, v12')
    k('v_mul_u32_u24 v11, 160, v11\nv_and_b32 v12, 3, v0\nv_mul_u32_u24 v12, 40, v12\nv_add_u32 v8, v11, v12')
    k(f'v_add_u32 v9, {3 * SLOT}, v8\nv_add_u32 v10, {6 * SLOT}, v8')
    k('v_and_b32 v11, 3, v0\nv_cmp_eq_u32 vcc, v11, v3')
    k(f'v_mul_u32_u24 v11, 800, v3\nv_bfe_u32 v12, v0, 2, 2\nv_mul_u32_u24 v12, 40, v12\nv_add3_u32 v11, v11, v12, 0\nv_add_u32 v11, {MISC_W}, v11')
    k(f'v_mov_b32 v12, {MISC_Z}\nv_cndmask_b32 v11, v12, v11, vcc')
    k('s_waitcnt lgkmcnt(0)')
    srd_ws(k, 44, 4, WS_FLAG, 0x1000 + 1024 * 128)
    k('v_mov_b32 v20, 0\nbuffer_load_dword v248, v20, s[44:47], 0 offen sc1')
    if opt.get('tlb', 0):
        srd_ws(k, 56, 4, 0, 0x1800000)
        k('v_lshlrev_b32 v22, 20, v0\ns_lshl_b32 s37, s2, 7\nbuffer_load_dword v1, v22, s[56:59], s37 offen')
        k(f's_load_dwordx2 s[48:49], s[0:1], {OUT}')
        for lo, nb in ((14, D * 1280), (16, D * 3456), (18, D * 3456), (26, F * 1280)):
            srd(k, 60, f's{lo}', f's{lo+1}', nb)
            k('buffer_load_dword v1, v22, s[60:63], s37 offen')
        k('s_waitcnt lgkmcnt(0)')
        srd(k, 60, 's48', 's49', S * 1280)
        k('buffer_load_dword v1, v22, s[60:63], s37 offen')
    srd_ws(k, 56, 4, WS_G1, 256 * G1_STRIDE)
    srd_ws(k, 60, 4, WS_O, S * 1280)
    k('s_lshl_b32 s36, s35, 4\nv_add_u32 v22, s36, v2')
    k(f'v_mul_u32_u24 v249, 80, v22\nv_mul_u32_u24 v13, 5120, v3\nv_add3_u32 v249, v249, v13, 0\nv_add_u32 v249, {PHI}, v249')
    k(f'v_mul_u32_u24 v250, 48, v22\nv_mul_u32_u24 v13, 3072, v3\nv_add3_u32 v250, v250, v13, 0\nv_add_u32 v250, {VV}, v250')
    k('v_bfe_u32 v12, v0, 2, 2\nv_lshl_add_u32 v12, v3, 3, v12\nv_and_b32 v13, 3, v0\nv_lshlrev_b32 v13, 3, v13')
    k(f's_mul_i32 s38, s35, 5120\ns_add_u32 s38, s38, {PHI}\ns_mul_i32 s37, s35, 3072\ns_add_u32 s37, s37, {VV}')
    k('v_mul_u32_u24 v251, 80, v12\nv_add3_u32 v251, v251, v13, s38\nv_mul_u32_u24 v252, 48, v12\nv_add3_u32 v252, v252, v13, s37')
    k(f's_lshl_b32 s68, s31, 5\ns_add_u32 s68, s68, s30\ns_mul_i32 s68, s68, {G1_STRIDE}\ns_mul_i32 s37, s35, 2240\ns_add_u32 s68, s68, s37')
    k('v_mul_u32_u24 v21, 80, v2\nv_lshl_add_u32 v21, v3, 3, v21\nv_add_u32 v21, s38, v21')
    k('v_cmp_gt_u32 s[50:51], 5, v2\nv_cmp_gt_u32 s[52:53], 2, v3\ns_and_b64 s[54:55], s[50:51], s[52:53]')
    k('v_mul_u32_u24 v253, 12, v0\nv_add_u32 v253, s38, v253')
    k('v_lshlrev_b32 v254, 4, v0\nv_cmp_gt_u32 vcc, 12, v0\nv_cndmask_b32 v255, v15, v254, vcc')
    CT = opt.get('ct', None)
    if CT:
        srd(k, 64, 's14', 's15', D * 1280); srd(k, 40, 's16', 's17', D * 3456); srd(k, 72, 's18', 's19', D * 3456); srd(k, 8, 's26', 's27', F * 1280)
        k(f's_lshl_b32 s22, s2, 2\ns_add_u32 s22, s22, s35\ns_mul_i32 s23, s22, {7 * 128}\ns_mul_i32 s22, s22, {17 * 128}')
        k('v_lshlrev_b32 v22, 7, v0\nv_cmp_gt_u32 vcc, 7, v0\nv_cndmask_b32 v23, v15, v22, vcc\nv_cmp_gt_u32 vcc, 17, v0\nv_cndmask_b32 v22, v15, v22, vcc')
    TCH = {'o': 'buffer_load_dword v1, v23, s[64:67], s23 offen', 'g': 'buffer_load_dword v1, v22, s[40:43], s22 offen',
           'u': 'buffer_load_dword v1, v22, s[72:75], s22 offen', 'd': 'buffer_load_dword v1, v22, s[8:11], s22 offen'}
    def ct(pos):
        if CT:
            for c in CT.get(pos, ''): k(TCH[c])
    k('s_barrier')
    k(f'{ring.rd_full(F_X)}\ns_waitcnt lgkmcnt(0)')
    ring.check_full(F_X)
    st()
    k('s_waitcnt vmcnt(0)\nv_add_u32 v248, 1, v248')
    ct(0)
    for ks in range(20):
        ln, ksl = ks // 2, ks % 2
        a = (4 if ln < 5 else 6) + ksl
        k(f'ds_read_b128 v[{XR + 4*ks}:{XR + 4*ks + 3}], v{a} offset:{(ln % 5) * 8192}')
    T = TMP
    k(f'v_mov_b32 v20, 0x3f803f80')
    for i in range(4): k(f'v_mov_b32 v{T+i}, 0')
    for ks in range(20):
        if ks % 4 == 0: k(f's_waitcnt lgkmcnt({min(15, 16 - ks)})')
        for i in range(4): k(f'v_dot2c_f32_bf16 v{T + i}, v{XR + 4*ks + i}, v20')
        if ks == 16: k(ring.set_free(R_X))
    k(f'v_add_f32 v{T}, v{T}, v{T+1}\nv_add_f32 v{T+2}, v{T+2}, v{T+3}\nv_add_f32 v{T}, v{T}, v{T+2}')
    red_g(k, T, T + 1)
    k(f'v_mul_f32 v12, {f2u(-1.0/640)}, v{T}')
    for i in range(80):
        a = T + 4 + 2 * (i % 4)
        k(f'v_lshlrev_b32 v{a}, 16, v{XR+i}\nv_and_b32 v{a+1}, 0xffff0000, v{XR+i}\nv_pk_add_f32 v[{a}:{a+1}], v[{a}:{a+1}], v[12:13] op_sel_hi:[1,0]\nv_cvt_pk_bf16_f32 v{XR+i}, v{a}, v{a+1}')
        if i == 70: k(ring.rd_full(0))
    st()
    ct(1)
    def waddr(slot): return (8 + slot // 3, (slot % 3) * SLOT)
    def rd(seg, ks):
        stage = seg * 5 + ks // 4; a, off = waddr(SLOT_OF[stage]); out = []
        for i_n in range(5):
            b = WB + (ks % 3) * 20 + i_n * 4
            for i in range(2):
                out.append(f'ds_read_b64_tr_b16 v[{b+2*i}:{b+2*i+1}], v{a} offset:{off + (ks % 4)*5120 + i*1280 + i_n*8}')
        return out
    def mf(ACC, ks, gram):
        out = []; x = XR + 4 * ks
        if gram:
            c = '0' if ks == 0 else f'v[{GR}:{GR+3}]'
            out.append(f'v_mfma_f32_16x16x32_bf16 v[{GR}:{GR+3}], v[{x}:{x+3}], v[{x}:{x+3}], {c}')
        for i_n in range(5):
            b = WB + (ks % 3) * 20 + i_n * 4; a = ACC + 4 * i_n
            c = '0' if ks == 0 else f'v[{a}:{a+3}]'
            out.append(f'v_mfma_f32_16x16x32_bf16 v[{a}:{a+3}], v[{b}:{b+3}], v[{x}:{x+3}], {c}')
        return out
    def gemm(seg, ACC, gram, hooks):
        for it in range(22):
            r = []
            if it < 20:
                if it % 4 == 0:
                    k('s_waitcnt lgkmcnt(0)' if it == 0 else 's_waitcnt lgkmcnt(10)')
                    ring.check_full(seg * 5 + it // 4)
                r = rd(seg, it)
                if it % 4 == 2 and it < 16: r = r + [ring.rd_full(seg * 5 + it // 4 + 1)]
            if it >= 2:
                younger = (10 if it - 1 < 20 else 0) + (1 if ((it - 1) % 4 == 2 and it - 1 < 16) else 0)
                k(f's_waitcnt lgkmcnt({younger})')
                for x in interleave(r, mf(ACC, it - 2, gram), 1.0): k(x)
            else:
                for x in r: k(x)
            if it in hooks: k(hooks[it])
    def load_wph():
        for i in range(5):
            for s in range(3):
                w = WPH + (i * 3 + s) * 4
                for h in range(2):
                    if s == 2 and h == 1: k(f'v_mov_b32 v{w+2}, 0\nv_mov_b32 v{w+3}, 0')
                    else: k(f'ds_read_b64_tr_b16 v[{w+2*h}:{w+2*h+1}], v11 offset:{(8*s + 4*h) * 40 + 8*i}')
    gemm(0, AK, True, {5: ring.set_free(R_S(0)), 9: ring.set_free(R_S(1)), 13: ring.set_free(R_S(2)), 17: ring.set_free(R_S(3)), 21: ring.set_free(R_K)})
    st()
    ct(2)
    load_wph()
    k('v_and_b32 v12, 3, v2')
    k(f'v_cmp_eq_u32 vcc, 1, v12\nv_cndmask_b32 v13, v{GR}, v{GR+1}, vcc\nv_cmp_eq_u32 vcc, 2, v12\nv_cndmask_b32 v13, v13, v{GR+2}, vcc\nv_cmp_eq_u32 vcc, 3, v12\nv_cndmask_b32 v13, v13, v{GR+3}, vcc')
    k('v_lshrrev_b32 v12, 2, v2\nv_cmp_eq_u32 vcc, v12, v3\nv_cndmask_b32 v13, 0, v13, vcc')
    red_g(k, 13, 12)
    k(f'v_mov_b32 v12, {f2u(1e-5)}\nv_fmac_f32 v12, {f2u(1.0/640)}, v13\nv_rsq_f32 v14, v12')
    RS = 14
    feature_map(k, AK, RS, TMP + 8, WPH, AV, AK, WPH, PK, TMP)
    k(f'{ring.rd_free(R_K)}\ns_waitcnt lgkmcnt(0)')
    ring.check(128 + 4 * R_K, 0)
    for i in range(5): k(f'ds_write_b128 v249, v[{PK + 4*i}:{PK + 4*i + 3}] offset:{16*i}')
    k(ring.rd_full(5))
    VB = TMP + 8
    k(f'v_mov_b32 v{VB+10}, 0x00003f80\nv_mov_b32 v{VB+11}, 0')
    ct(3)
    GB = PK
    gemm(1, AV, False, {5: ring.set_free(R_S(5)), 9: ring.set_free(R_S(6)), 13: ring.set_free(R_S(7)), 17: ring.set_free(R_S(8))})
    st()
    for i in range(10):
        k(f'v_pk_mul_f32 v[{AV + 2*i}:{AV + 2*i + 1}], v[{AV + 2*i}:{AV + 2*i + 1}], v[{RS}:{RS+1}] op_sel_hi:[1,0]')
    for i in range(10): k(f'v_cvt_pk_bf16_f32 v{VB + i}, v{AV + 2*i}, v{AV + 2*i + 1}')
    for i in range(3): k(f'ds_write_b128 v250, v[{VB + 4*i}:{VB + 4*i + 3}] offset:{16*i}')
    k(ring.set_free(R_PHI))
    k(f'{ring.rd_free(R_PHI)}\ns_waitcnt lgkmcnt(0)')
    ring.check(128 + 4 * R_PHI, 0)
    FA = WB; FBv = WB + 24
    for ks in range(2):
        for bb in range(2):
            for i in range(2):
                b = FBv + (ks * 2 + bb) * 4 + 2 * i
                k(f'ds_read_b64_tr_b16 v[{b}:{b+1}], v252 offset:{(ks*32 + i*4) * 48 + bb*32}')
        for a in range(3):
            for i in range(2):
                b = FA + (ks * 3 + a) * 4 + 2 * i
                k(f'ds_read_b64_tr_b16 v[{b}:{b+1}], v251 offset:{(ks*32 + i*4) * 80 + a*32}')
    KV = AK
    for ks in range(2):
        k(f's_waitcnt lgkmcnt({10 if ks == 0 else 0})')
        for a in range(3):
            for bb in range(2):
                d = KV + (a * 2 + bb) * 4; fa = FA + (ks*3 + a) * 4; fb = FBv + (ks*2 + bb) * 4
                c = '0' if ks == 0 else f'v[{d}:{d+3}]'
                k(f'v_mfma_f32_16x16x32_bf16 v[{d}:{d+3}], v[{fa}:{fa+3}], v[{fb}:{fb+3}], {c}')
    for i in range(3): k(f'v_mov_b32 v{GB + 4*i + 3}, v248')
    for a, bb in [(0, 0), (1, 0), (0, 1), (1, 1), (2, 0), (2, 1)]:
        d = KV + (a * 2 + bb) * 4; p = VB + (a * 2 + bb) * 2
        k(f'v_cvt_pk_bf16_f32 v{p}, v{d}, v{d+1}\nv_cvt_pk_bf16_f32 v{p+1}, v{d+2}, v{d+3}')
    for a, bb in [(0, 0), (1, 0), (0, 1), (1, 1), (2, 0), (2, 1)]:
        p = VB + (a * 2 + bb) * 2
        if (a, bb) == (0, 1): k('s_mov_b64 exec, s[50:51]')
        if (a, bb) == (2, 0): k('s_mov_b64 exec, s[52:53]')
        if (a, bb) == (2, 1): k('s_mov_b64 exec, s[54:55]')
        k(f'ds_write_b64 v21, v[{p}:{p+1}] offset:{bb*16*80 + a*32}')
    k('s_mov_b64 exec, -1')
    for i in range(3):
        k(f'ds_read_b32 v{GB + 4*i}, v253 offset:{768*i}\nds_read_b32 v{GB + 4*i + 1}, v253 offset:{768*i + 4}\nds_read_b32 v{GB + 4*i + 2}, v253 offset:{768*i + 8}')
    k(ring.rd_full(10))
    for i in range(3):
        k(f's_waitcnt lgkmcnt({7 - 3*i})\nbuffer_store_dwordx4 v[{GB + 4*i}:{GB + 4*i + 3}], v{254 if i < 2 else 255}, s[56:59], s68 offen offset:{1024*i} sc1')
    k(ring.set_free(R_ST))
    st()
    gemm(2, AK, False, {opt.get('stk', 7): f's_waitcnt vmcnt(0)\n{ring.set_free(R_DR)}', 21: ring.set_free(R_Q)})
    load_wph()
    PQ = PK
    feature_map(k, AK, RS, TMP + 8, WPH, AV, AK, WPH, PQ, TMP)
    st()
    k(f'{ring.rd_free(R_ST)}')
    k('s_waitcnt lgkmcnt(0)')
    ring.check(128 + 4 * R_ST, 0)
    for i in range(5): k(f'ds_write_b128 v249, v[{PQ + 4*i}:{PQ + 4*i + 3}] offset:{16*i}')
    k(ring.set_free(R_PQ))
    k(f's_mul_i32 s36, s35, 5120\ns_add_u32 s36, s36, {PHI}\nv_mul_u32_u24 v5, 80, v2\nv_lshl_add_u32 v5, v3, 4, v5\nv_add_u32 v5, s36, v5')
    k('v_cmp_eq_u32 vcc, 0, v3\nv_cndmask_b32 v12, 0, -1, vcc')
    k(f's_mul_i32 s37, s35, 1680\ns_add_u32 s37, s37, {KVT}')
    k('v_mul_u32_u24 v160, 80, v2\nv_lshl_add_u32 v161, v3, 4, v160\nv_add_u32 v161, s37, v161\nv_add_u32 v160, s37, v160')
    k('v_and_b32 v162, 3, v2\nv_mul_u32_u24 v162, 80, v162\nv_lshl_add_u32 v163, v3, 4, v162\nv_add_u32 v163, s37, v163\nv_add_u32 v162, s37, v162')
    k('v_lshlrev_b32 v164, 4, v3\nv_add_u32 v164, s37, v164\nv_mov_b32 v165, s37')
    k(f's_mul_i32 s37, s35, 40\ns_add_u32 s37, s37, {OST}\nv_mul_u32_u24 v20, 160, v2\nv_add_u32 v20, s37, v20\nv_lshl_add_u32 v21, v3, 3, v20')
    k('s_lshl_b32 s36, s30, 6\ns_lshl_b32 s37, s35, 4\ns_add_u32 s36, s36, s37\ns_mul_i32 s36, s36, 1280\ns_mul_i32 s37, s31, 160\ns_add_u32 s36, s36, s37')
    k(f's_mul_i32 s37, s35, 2560\ns_add_u32 s37, s37, {OST}\nv_lshlrev_b32 v22, 4, v0\nv_add_u32 v22, s37, v22')
    for i in range(3):
        k(f'v_add_u32 v13, {64*i}, v0\nv_mul_u32_u24 v4, 6554, v13\nv_lshrrev_b32 v4, 16, v4\nv_mul_u32_u24 v23, 10, v4\nv_sub_u32 v23, v13, v23\nv_mul_u32_u24 v4, 1280, v4\nv_lshl_add_u32 v{250 + i}, v23, 4, v4')
    k('v_cmp_gt_u32 vcc, 32, v0\nv_cndmask_b32 v252, v15, v252, vcc')
    RX = 168
    srd(k, 40, 's8', 's9', S * 1280); srd_ws(k, 64, 4, WS_H, S * 1280); srd_ws(k, 72, 4, WS_ST, 8 * S * 8)
    k('v_mul_u32_u24 v4, 1280, v2\nv_mul_u32_u24 v13, 40, v3\nv_add_u32 v4, v4, v13')
    k(f'buffer_load_dwordx4 v[{RX}:{RX+3}], v4, s[40:43], s36 offen\nbuffer_load_dwordx4 v[{RX+4}:{RX+7}], v4, s[40:43], s36 offen offset:16\nbuffer_load_dwordx2 v[{RX+8}:{RX+9}], v4, s[40:43], s36 offen offset:32')
    k('s_lshl_b32 s38, s30, 2\ns_add_u32 s38, s38, s35\ns_mul_i32 s39, s38, 20480\ns_mul_i32 s48, s31, 2560\ns_add_u32 s48, s48, s39')
    k('s_lshl_b32 s49, s38, 10\ns_add_u32 s49, s49, 0x1000\ns_lshl_b32 s50, s31, 7\ns_add_u32 s50, s50, s49')
    k(f's_mul_i32 s37, s35, 2560\ns_add_u32 s37, s37, {OST}\nv_mul_u32_u24 v6, 160, v2\nv_lshl_add_u32 v7, v3, 4, v6\nv_add_u32 v7, s37, v7')
    k('v_add3_u32 v6, v6, v13, s37')
    k('v_cmp_gt_u32 vcc, 32, v0\nv_cndmask_b32 v255, v15, v254, vcc\nv_and_b32 v253, 7, v0\nv_lshlrev_b32 v253, 7, v253')
    k(f'{ring.rd_free(R_PQ)}\ns_waitcnt lgkmcnt(0)')
    ring.check(128 + 4 * R_PQ, 0)
    BF = 24
    for tt in range(4):
        for ks in range(2):
            b = BF + (tt * 2 + ks) * 4
            k(f'ds_read_b128 v[{b}:{b+3}], v5 offset:{tt * 1280 + ks * 64}')
    k('s_waitcnt lgkmcnt(0)')
    for tt in range(4):
        for j in range(4): k(f'v_and_b32 v{BF + (tt*2 + 1)*4 + j}, v12, v{BF + (tt*2 + 1)*4 + j}')
    Lw = k.label('wkv'); Lgo = k.label('gokv')
    k(f'{Lw}:\n{ring.rd_full(F_SEEN)}\ns_waitcnt lgkmcnt(0)\nv_readfirstlane_b32 s70, v19\ns_cmp_lg_u32 s70, 0\ns_cbranch_scc1 {Lgo}\ns_sleep 1\ns_branch {Lw}\n{Lgo}:')
    AF = 56
    k(f'ds_read_b128 v[{AF}:{AF+3}], v164 offset:1600\nds_read_b128 v[{AF+4}:{AF+7}], v165 offset:1664')
    k(f'ds_read_b128 v[{AF+8}:{AF+11}], v161\nds_read_b128 v[{AF+12}:{AF+15}], v160 offset:64')
    k(f'ds_read_b128 v[{AF+16}:{AF+19}], v163 offset:1280\nds_read_b128 v[{AF+20}:{AF+23}], v162 offset:1344')
    O = 80
    for a in range(3):
        k(f's_waitcnt lgkmcnt({4 - 2*a})')
        for ks in range(2):
            for tt in range(4):
                d = O + (a * 4 + tt) * 4; fa = AF + (a * 2 + ks) * 4; fb = BF + (tt * 2 + ks) * 4
                c = '0' if ks == 0 else f'v[{d}:{d+3}]'
                k(f'v_mfma_f32_16x16x32_bf16 v[{d}:{d+3}], v[{fa}:{fa+3}], v[{fb}:{fb+3}], {c}')
        if a == 1:
            for tt in range(4): k(f'v_add_f32 v{O + 4*tt}, {f2u(1e-6)}, v{O + 4*tt}')
            for tt in range(4): k(f'v_rcp_f32 v{O + 4*tt}, v{O + 4*tt}')
    st()
    for a in (1, 2):
        for tt in range(4):
            d = O + (a * 4 + tt) * 4; r = O + 4 * tt; p = 128 + (a * 4 + tt) * 2
            k(f'v_pk_mul_f32 v[{d}:{d+1}], v[{d}:{d+1}], v[{r}:{r+1}] op_sel_hi:[1,0]\nv_pk_mul_f32 v[{d+2}:{d+3}], v[{d+2}:{d+3}], v[{r}:{r+1}] op_sel_hi:[1,0]')
            k(f'v_cvt_pk_bf16_f32 v{p}, v{d}, v{d+1}\nv_cvt_pk_bf16_f32 v{p+1}, v{d+2}, v{d+3}')
            if a == 1: k(f'ds_write_b64 v21, v[{p}:{p+1}] offset:{tt * 2560}')
            else: k(f'ds_write_b64 v20, v[{p}:{p+1}] offset:{tt * 2560 + 32}')
    k(ring.set_free(R_O))
    k(f'{ring.rd_free(R_O)}\ns_waitcnt lgkmcnt(0)')
    ring.check(128 + 4 * R_O, 0)
    for i in range(3): k(f'ds_read_b128 v[{24 + 4*i}:{27 + 4*i}], v7 offset:{64*i}')
    for i in range(3): k(f's_waitcnt lgkmcnt({2 - i})\nbuffer_store_dwordx4 v[{24 + 4*i}:{27 + 4*i}], v{254 if i < 2 else 255}, s[60:63], s48 offen offset:{1024*i} sc1')
    NPRE = 3
    def rd2(ks):
        a, off = waddr(WO_SLOT[ks // 4]); out = []
        for i_n in range(5):
            b = WB + (ks % 3) * 20 + i_n * 4
            for i in range(2):
                out.append(f'ds_read_b64_tr_b16 v[{b+2*i}:{b+2*i+1}], v{a} offset:{off + (ks % 4)*5120 + i*1280 + i_n*8}')
        return out
    Lw = k.label('wwo'); Lgo = k.label('wogo')
    k(f'{Lw}:\n{ring.rd_full(F_WO)}\ns_waitcnt lgkmcnt(0)\nv_readfirstlane_b32 s70, v19\ns_cmp_eq_u32 s70, 0x10100\ns_cbranch_scc1 {Lgo}\ns_sleep 1\ns_branch {Lw}\n{Lgo}:')
    for r in rd2(0) + rd2(1): k(r)
    k('v_mov_b32 v20, 0\ns_waitcnt vmcnt(0)\ns_mov_b64 exec, 1\nbuffer_store_dword v248, v20, s[44:47], s50 offen sc1\ns_mov_b64 exec, -1\ns_waitcnt vmcnt(0)')
    Lp = k.label('pf1'); Ld = k.label('df1')
    k(f's_mov_b32 s71, 100000\n{Lp}:\nbuffer_load_dword v21, v253, s[44:47], s49 offen sc1\ns_waitcnt vmcnt(0)\nv_cmp_ne_u32 vcc, v21, v248\ns_cmp_eq_u64 vcc, 0')
    k(f's_cbranch_scc1 {Ld}\ns_sleep {BO}\ns_sub_u32 s71, s71, 1\ns_cmp_lg_u32 s71, 0\ns_cbranch_scc1 {Lp}\n{Ld}:')
    st()
    for ks in range(20):
        if ks % 4 == 0 and ks: k('s_add_u32 s39, s39, 4096')
        k(f'buffer_load_dwordx4 v[{XR + 4*ks}:{XR + 4*ks + 3}], v254, s[60:63], s39 offen offset:{(ks % 4) * 1024} sc1')
    Lnb = k.label('nobump')
    k(f's_or_b32 s37, s2, s35\ns_cmp_lg_u32 s37, 0\ns_cbranch_scc1 {Lnb}\ns_waitcnt vmcnt(0)\ns_mov_b64 exec, 1\nbuffer_store_dword v248, v20, s[44:47], 0 offen sc1\ns_mov_b64 exec, -1\ns_waitcnt vmcnt(0)\n{Lnb}:')
    AH = 184
    for ks in range(20):
        r = rd2(ks + 2) if ks + 2 < 20 else []
        k(f's_waitcnt vmcnt({19 - ks}) lgkmcnt({10 if ks + 1 < 20 else 0})')
        for x in interleave(r, mf(AH, ks, False), 1.0): k(x)
    st()
    HP = 208
    for i in range(10):
        q = TMP + 2 * (i % 4)
        k(f'v_lshlrev_b32 v{q}, 16, v{RX+i}\nv_and_b32 v{q+1}, 0xffff0000, v{RX+i}\nv_pk_add_f32 v[{q}:{q+1}], v[{q}:{q+1}], v[{AH+2*i}:{AH+2*i+1}]\nv_cvt_pk_bf16_f32 v{HP+i}, v{q}, v{q+1}')
    for i in range(5): k(f'ds_write_b64 v6, v[{HP+2*i}:{HP+2*i+1}] offset:{8*i}')
    for i in range(3): k(f'ds_read_b128 v[{24 + 4*i}:{27 + 4*i}], v22 offset:{1024*i}')
    k('v_mov_b32 v12, 0\nv_mov_b32 v13, 0\nv_mov_b32 v21, 0x3f803f80')
    for i in range(10): k(f'v_dot2c_f32_bf16 v12, v{HP+i}, v21\nv_dot2c_f32_bf16 v13, v{HP+i}, v{HP+i}')
    for i in range(3): k(f's_waitcnt lgkmcnt({2 - i})\nbuffer_store_dwordx4 v[{24 + 4*i}:{27 + 4*i}], v{250 + i}, s[64:67], s36 offen {opt.get("spol", "")}')
    k('v_permlane32_swap_b32 v12, v13\nv_add_f32 v12, v12, v13\nv_mov_b32 v13, v12\nv_permlane16_swap_b32 v12, v13\nv_add_f32 v12, v12, v13')
    k('s_lshl_b32 s37, s31, 14\ns_lshl_b32 s38, s38, 7\ns_add_u32 s37, s37, s38\nv_lshrrev_b32 v13, 1, v3\nv_lshlrev_b32 v13, 2, v13\nv_lshl_add_u32 v13, v2, 3, v13')
    k('buffer_store_dword v12, v13, s[72:75], s37 offen')
    st.dump(0, 35)
    k('s_endpgm')
    ring.emit_slow()
    k.fix_hazards_fast()
    errs = k.check_waits()
    if errs: print(name, 'WAIT ERRS', errs[:10])
    return k, (name, 256, 512, LDS1)
```

```python
import sys; sys.path.insert(0,'gen')
from gemm import *
from k12 import k12_kernel
from k1g import k1_kernel
hdr = [l.rstrip('\n') for l in open('sequential_preLN__linear_kernel_hedgehog__glu_gated_geglu__prompt.s.ref') if l.startswith(';') and '@launch' not in l and 'Override' not in l and 'grid=ceil' not in l]
def mk(fn, o1={}, o3={}, o4={}, order=None, st=False):
    ks = [k12_kernel('k12_kernel', st, o1), gemm_kernel('k3_kernel','k3', st, {'nsp':8, 'ncs':8, **o3}), gemm_kernel('k4_kernel','k4', st, o4)]
    ls = [l for _,l in ks]
    if order: ls = [ls[i] for i in order]
    open(fn,'w').write(build_file(hdr, [k for k,_ in ks], ls))
def mk4(fn, o1={}, o2={}, o3={}, o4={}, order=None):
    ks = [k1_kernel('k1_kernel', False, o1), gemm_kernel('k2_kernel','k2', False, o2), gemm_kernel('k3_kernel','k3', False, o3), gemm_kernel('k4_kernel','k4', False, o4)]
    ls = [l for _,l in ks]
    if order: ls = [ls[i] for i in order]
    open(fn,'w').write(build_file(hdr, [k for k,_ in ks], ls))
sp = {'spol':'sc1'}
mk('h_a.s', {**sp, 'wa':'ogu'}, sp, sp)
mk('h_b.s', {**sp, 'wa':'ogu', 'tlb':1}, sp, sp)
mk('h_c.s', {**sp, 'wa':'ogud', 't_wd':0, 'tlb':1}, sp, sp)
mk('h_d.s', {**sp, 'wa':'ogu', 'tlb':1}, sp, sp, order=[0,0,1,2])
mk('h_e.s', {**sp, 'wa':'ogu', 'tlb':1}, sp, sp, order=[1,2,0,1,2])
```

```python
import sys; sys.path.insert(0,'gen')
from gemm import *
from k12 import k12_kernel
from k1g import k1_kernel
hdr = [l.rstrip('\n') for l in open('sequential_preLN__linear_kernel_hedgehog__glu_gated_geglu__prompt.s.ref') if l.startswith(';') and '@launch' not in l and 'Override' not in l and 'grid=ceil' not in l]
def mk(fn, o1={}, o3={}, o4={}, order=None, st=False):
    ks = [k12_kernel('k12_kernel', st, o1), gemm_kernel('k3_kernel','k3', st, {'nsp':8, 'ncs':8, **o3}), gemm_kernel('k4_kernel','k4', st, o4)]
    ls = [l for _,l in ks]
    if order: ls = [ls[i] for i in order]
    open(fn,'w').write(build_file(hdr, [k for k,_ in ks], ls))
def mk4(fn, o1={}, o2={}, o3={}, o4={}, order=None):
    ks = [k1_kernel('k1_kernel', False, o1), gemm_kernel('k2_kernel','k2', False, o2), gemm_kernel('k3_kernel','k3', False, o3), gemm_kernel('k4_kernel','k4', False, o4)]
    ls = [l for _,l in ks]
    if order: ls = [ls[i] for i in order]
    open(fn,'w').write(build_file(hdr, [k for k,_ in ks], ls))
sp = {'spol':'sc1'}

def probe(a, b, cyc=False):
    k = Kernel('probe_kernel')
    k(f's_cmp_ge_u32 s2, 1\ns_cbranch_scc1 Lpe\ns_load_dwordx2 s[4:5], s[0:1], {WS}\ns_waitcnt lgkmcnt(0)')
    srd_ws(k, 8, 4, WS_DBG, 256)
    k(f'v_mov_b32 v1, 0\nbuffer_load_dword v2, v1, s[8:11], 0 offen offset:{4*a} sc1\nbuffer_load_dword v3, v1, s[8:11], 0 offen offset:{4*b} sc1\ns_waitcnt vmcnt(0)')
    if cyc: k('v_lshrrev_b32 v2, 1, v2')
    else: k('v_sub_u32 v2, v3, v2\nv_lshlrev_b32 v2, 3, v2')
    k('v_min_u32 v2, 0x20000, v2\ns_nop 1\nv_readfirstlane_b32 s12, v2\ns_memrealtime s[14:15]\ns_waitcnt lgkmcnt(0)')
    k('Lps:\ns_memrealtime s[16:17]\ns_waitcnt lgkmcnt(0)\ns_sub_u32 s18, s16, s14\ns_cmp_lt_u32 s18, s12\ns_cbranch_scc1 Lps\nLpe:\ns_endpgm')
    k.fix_hazards_fast()
    return k, ('probe_kernel', 1, 64, 0)
def mkp(fn, a, b, cyc=False):
    o1 = {**sp, 'wa':'ogu'}
    ks = [k12_kernel('k12_kernel', 'dbg', o1), gemm_kernel('k3_kernel','k3', 'dbg', {'nsp':8, 'ncs':8, **sp}), gemm_kernel('k4_kernel','k4', 'dbg', sp), probe(a, b, cyc)]
    open(fn,'w').write(build_file(hdr, [k for k,_ in ks], [l for _,l in ks]))
mkp('h_a.s', 0, 0)
mkp('h_b.s', 0, 1)
mkp('h_c.s', 8, 9)
mkp('h_d.s', 12, 13)
mkp('h_e.s', 0, 13)
mkp('h_f.s', 7, 7, True)
```
